```python
import torch

def _softmax(x, axis=-1):
    return torch.softmax(x, dim=axis)
def _gelu(x):
    return torch.nn.functional.gelu(x, approximate="tanh")
def _silu(x):
    return torch.nn.functional.silu(x)
def _sigmoid(x):
    return torch.sigmoid(x)
def _layernorm(x, axis=-1, eps=1e-5):
    m = x.mean(dim=axis, keepdim=True)
    v = x.var(dim=axis, keepdim=True, unbiased=False)
    return (x - m) / torch.sqrt(v + eps)
def _scatter_add(tgt, idx, src, axis=0):
    return tgt.clone().index_add_(axis, idx, src)
def _segment_sum(src, seg, n):
    out = torch.zeros((n,) + src.shape[1:], dtype=src.dtype)
    return out.index_add_(0, seg, src)
def _pad(x, pw):
    flat = tuple(v for pair in reversed(pw) for v in pair)
    return torch.nn.functional.pad(x, flat)

kernel_name = 'standalone__gqa_softmax__decode'

def setup_inputs():

    _w = (lambda a: (lambda t: t.to(torch.bfloat16) if t.is_floating_point() else t)(torch.as_tensor(a)))
    B, Hq, Hkv, Sq, Sk, D = 2, 32, 32, 1, 4096, 128
    return {
        "q": _w((lambda *s: torch.randn(*s, dtype=torch.bfloat16) * 0.8)(B, Hq, Sq, D)),
        "k": _w((lambda *s: torch.randn(*s, dtype=torch.bfloat16) * 0.8)(B, Hkv, Sk, D)),
        "v": _w((lambda *s: torch.randn(*s, dtype=torch.bfloat16) * 0.05)(B, Hkv, Sk, D)),
    }

def reference(q, k, v):
    B, Hq, Sq, D = q.shape
    Hkv = k.shape[1]
    rep = Hq // Hkv
    k = (lambda x, n, axis: torch.repeat_interleave(x, n, dim=axis))(k, rep, axis=1)
    v = (lambda x, n, axis: torch.repeat_interleave(x, n, dim=axis))(v, rep, axis=1)
    scale = D ** -0.5
    scores = torch.einsum("bhqd,bhkd->bhqk", q, k) * scale
    p = _softmax(scores, axis=-1)
    return torch.einsum("bhqk,bhkd->bhqd", p, v)
```

```python
import sys, argparse

HEADER = """; Kernarg layout for this problem (48 bytes, ptrs only, base s[0:1]):
"""

class E:
    def __init__(self): self.l = []
    def __call__(self, s): self.l.append("    " + s)
    def label(self, s): self.l.append(s + ":")
    def c(self, s): self.l.append("    ; " + s)
    def text(self): return "\n".join(self.l) + "\n"

def vr(a, n=1):
    return f"v{a}" if n == 1 else f"v[{a}:{a+n-1}]"

def gen(NW=16, V1=None, ld="nt", interleave=True, order_barrier=True):
    KPW = 1024 // NW
    NT = KPW // 16
    NL = NT * 4
    if V1 is None: V1 = NL // 2
    assert V1 % 4 == 0 and V1 <= NL
    V2 = NL - V1
    ldf = (" " + ld) if ld else ""
    e = E()
    vTID = 0; vOFF = 1; vQ = 4
    vP = 8
    vX = 12
    vY = 14; vT = 15
    vS = 16
    base = vS + NT
    base = (base + 3) // 4 * 4
    vK = base
    vV1 = vK + NL * 4
    vend = vV1 + V1 * 4
    free = vK + V2 * 4
    nfree = NL * 4 - V2 * 4
    extra = 0
    need = 4 + 8 + 4
    if nfree < need:
        free = vend; vend += need
    vM = free; vA = free + 4; vACC = free + 12
    nvgpr = vend
    tile_stride = NW * 4096 if interleave else 4096
    wave_stride = 4096 if interleave else KPW * 256
    sQ = 4; sKp = 6; sVp = 8; sO = 10; sD = 12; sWS = 14
    sSRDK = 16; sSRDV = 20; sW = 24; sT0 = 25
    sTile = 32
    LDS_MAX = 0; LDS_L = 256; LDS_ACC = 512
    lds_bytes = LDS_ACC + NW * 512

    e("s_cmp_ge_u32 s2, 256")
    e("s_cbranch_scc1 L_end")
    e("s_load_dwordx4 s[4:7], s[0:1], 0")
    e("s_load_dwordx4 s[8:11], s[0:1], 16")
    e("s_load_dwordx4 s[12:15], s[0:1], 32")
    e(f"v_lshrrev_b32 v2, 6, v0")
    e(f"v_and_b32 v3, 63, v0")
    e(f"v_readfirstlane_b32 s{sW}, v2")
    e(f"v_lshlrev_b32 v{vOFF}, 4, v3")
    e(f"v_mul_u32_u24 v2, {wave_stride}, v2")
    e(f"v_add_u32 v{vOFF}, v{vOFF}, v2")
    e(f"v_and_b32 v2, 15, v0")
    e(f"v_lshlrev_b32 v2, 4, v2")
    e(f"s_lshr_b32 s{sT0}, s2, 2")
    e(f"s_lshl_b32 s{sT0+1}, s{sT0}, 8")
    e(f"v_add_u32 v2, s{sT0+1}, v2")
    for t in range(NT):
        e(f"s_mov_b32 s{sTile+t}, {t*tile_stride}")
    e(f"s_lshl_b32 s{sT0+2}, s2, 18")
    e(f"s_mov_b32 s{sSRDK+2}, 0x40000")
    e(f"s_mov_b32 s{sSRDK+3}, 0x20000")
    e(f"s_mov_b32 s{sSRDV+2}, 0x40000")
    e(f"s_mov_b32 s{sSRDV+3}, 0x20000")
    e("s_waitcnt lgkmcnt(0)")
    e(f"s_add_u32 s{sSRDK}, s{sKp}, s{sT0+2}")
    e(f"s_addc_u32 s{sSRDK+1}, s{sKp+1}, 0")
    e(f"s_add_u32 s{sSRDV}, s{sVp}, s{sT0+2}")
    e(f"s_addc_u32 s{sSRDV+1}, s{sVp+1}, 0")
    e(f"global_load_dwordx4 {vr(vQ,4)}, v2, s[{sQ}:{sQ+1}]")
    def ldK(n):
        t, j = divmod(n, 4)
        e(f"buffer_load_dwordx4 {vr(vK+4*n,4)}, v{vOFF}, s[{sSRDK}:{sSRDK+3}], s{sTile+t} offen offset:{j*1024}{ldf}")
    def vreg(n):
        return vV1 + 4*n if n < V1 else vK + 4*(n - V1)
    def ldV(n):
        t, j = divmod(n, 4)
        e(f"buffer_load_dwordx4 {vr(vreg(n),4)}, v{vOFF}, s[{sSRDV}:{sSRDV+3}], s{sTile+t} offen offset:{j*1024}{ldf}")
    for n in range(NL): ldK(n)
    if order_barrier: e("s_barrier")
    for n in range(V1): ldV(n)
    issued = 1 + NL + V1
    nextV = V1
    for t in range(NT):
        need_done = 1 + 4*(t+1)
        e(f"s_waitcnt vmcnt({issued - need_done})")
        kb = vK + 16*t
        for c in range(4):
            for j in range(4):
                src2 = "0" if c == 0 else f"v{vP+j}"
                e(f"v_dot2_f32_bf16 v{vP+j}, v{kb+4*j+c}, v{vQ+c}, {src2}")
        if nextV < NL and (nextV - V1) // 4 <= t:
            for _ in range(4):
                ldV(nextV); nextV += 1; issued += 1
        else:
            e("s_nop 2")
        e(f"v_add_f32_dpp v{vX}, v{vP}, v{vP} row_ror:8 row_mask:0xf bank_mask:0x3")
        e(f"v_add_f32_dpp v{vX+1}, v{vP+2}, v{vP+2} row_ror:8 row_mask:0xf bank_mask:0x3")
        e(f"v_add_f32_dpp v{vX}, v{vP+1}, v{vP+1} row_ror:8 row_mask:0xf bank_mask:0xc")
        e(f"v_add_f32_dpp v{vX+1}, v{vP+3}, v{vP+3} row_ror:8 row_mask:0xf bank_mask:0xc")
        e("s_nop 0")
        e(f"v_add_f32_dpp v{vY}, v{vX}, v{vX} row_half_mirror row_mask:0xf bank_mask:0x5")
        e(f"v_add_f32_dpp v{vY}, v{vX+1}, v{vX+1} row_half_mirror row_mask:0xf bank_mask:0xa")
        e("s_nop 1")
        e(f"v_add_f32_dpp v{vY}, v{vY}, v{vY} quad_perm:[1,0,3,2] row_mask:0xf bank_mask:0xf")
        e("s_nop 1")
        e(f"v_add_f32_dpp v{vS+t}, v{vY}, v{vY} quad_perm:[2,3,0,1] row_mask:0xf bank_mask:0xf")
    assert nextV == NL, (nextV, NL)
    e(f"v_max_f32 v{vT}, v{vS}, v{vS+1}")
    for t in range(2, NT, 2):
        e(f"v_max3_f32 v{vT}, v{vT}, v{vS+t}, v{vS+t+1}")
    e("s_nop 1")
    e(f"v_max_f32_dpp v{vT}, v{vT}, v{vT} row_ror:4 row_mask:0xf bank_mask:0xf")
    e("s_nop 1")
    e(f"v_max_f32_dpp v{vT}, v{vT}, v{vT} row_ror:8 row_mask:0xf bank_mask:0xf")
    e(f"v_lshrrev_b32 v2, 4, v0")
    e(f"v_lshlrev_b32 v2, 2, v2")
    e(f"ds_write_b32 v2, v{vT} offset:{LDS_MAX}")
    e(f"v_and_b32 v3, 15, v0")
    e(f"v_and_b32 v{vX}, 1, v3")
    e(f"v_mov_b32 v{vX+1}, 0xffff")
    e(f"v_lshlrev_b32 v{vX}, 4, v{vX}")
    e(f"v_lshlrev_b32 v{vX}, v{vX}, v{vX+1}")
    e(f"v_lshrrev_b32 v{vX+1}, 1, v3")
    for r in range(4):
        e(f"v_cmp_eq_u32 vcc, {r}, v{vX+1}")
        e("s_nop 1")
        e(f"v_cndmask_b32 v{vM+r}, 0, v{vX}, vcc")
    for r in range(4):
        e(f"v_mov_b32 v{vACC+r}, 0")
    e(f"v_and_b32 v3, {NW-1}, v0")
    e(f"v_lshlrev_b32 v3, 4, v3")
    e("s_waitcnt lgkmcnt(0)")
    e("s_barrier")
    e(f"ds_read_b128 {vr(vP,4)}, v3 offset:{LDS_MAX}")
    e("s_waitcnt lgkmcnt(0)")
    e(f"v_max3_f32 v{vT}, v{vP}, v{vP+1}, v{vP+2}")
    e(f"v_max_f32 v{vT}, v{vT}, v{vP+3}")
    sh = 1
    while sh < NW:
        e("s_nop 1")
        e(f"v_max_f32_dpp v{vT}, v{vT}, v{vT} row_ror:{sh} row_mask:0xf bank_mask:0xf")
        sh *= 2
    import math
    e(f"s_mov_b32 s{sT0+3}, 0x{f32hex(128**-0.5 * math.log2(math.e)):08x}")
    e(f"v_mul_f32 v{vT}, s{sT0+3}, v{vT}")
    for t in range(NT):
        e(f"v_fma_f32 v{vS+t}, v{vS+t}, s{sT0+3}, -v{vT}")
    for t in range(NT):
        e(f"v_exp_f32 v{vS+t}, v{vS+t}")
    e("s_nop 0")
    e(f"v_add_f32 v{vY}, v{vS}, v{vS+1}")
    for t in range(2, NT):
        e(f"v_add_f32 v{vY}, v{vY}, v{vS+t}")
    for t in range(NT):
        e(f"v_cvt_pk_bf16_f32 v{vS+t}, v{vS+t}, v{vS+t}")
    e(f"v_add_f32_dpp v{vY}, v{vY}, v{vY} row_ror:4 row_mask:0xf bank_mask:0xf")
    e("s_nop 1")
    e(f"v_add_f32_dpp v{vY}, v{vY}, v{vY} row_ror:8 row_mask:0xf bank_mask:0xf")
    e("s_nop 0")
    e(f"ds_write_b32 v2, v{vY} offset:{LDS_L}")
    e("s_waitcnt lgkmcnt(0)")
    e("s_barrier")
    e(f"ds_read_b128 {vr(vP,4)}, v3 offset:{LDS_L}")
    e("s_waitcnt lgkmcnt(0)")
    e(f"v_add_f32 v{vP}, v{vP}, v{vP+1}")
    e(f"v_add_f32 v{vP+2}, v{vP+2}, v{vP+3}")
    e(f"v_add_f32 v{vY}, v{vP}, v{vP+2}")
    sh = 1
    while sh < NW:
        e("s_nop 1")
        e(f"v_add_f32_dpp v{vY}, v{vY}, v{vY} row_ror:{sh} row_mask:0xf bank_mask:0xf")
        sh *= 2
    bank_of_j = {0: 0, 2: 1, 1: 2, 3: 3}
    for n in range(NL):
        t, j = divmod(n, 4)
        a = vA + 4*(n & 1)
        for r in range(4):
            e(f"v_and_b32_dpp v{a+r}, v{vS+t}, v{vM+r} row_newbcast:{4*bank_of_j[j]} row_mask:0xf bank_mask:0xf")
        e(f"s_waitcnt vmcnt({NL-1-n})")
        e("s_nop 0")
        e(f"v_mfma_f32_16x16x32_bf16 {vr(vACC,4)}, {vr(a,4)}, {vr(vreg(n),4)}, {vr(vACC,4)}")
    e(f"v_and_b32 v3, 63, v0")
    e(f"v_lshlrev_b32 v3, 4, v3")
    e(f"s_lshl_b32 s{sT0+4}, s{sW}, 9")
    e(f"v_add_u32 v2, s{sT0+4}, v3")
    e("s_mov_b32 exec_hi, 0")
    e("s_nop 4")
    e(f"ds_write_b128 v2, {vr(vACC,4)} offset:{LDS_ACC}")
    e("s_mov_b64 exec, -1")
    e("s_waitcnt lgkmcnt(0)")
    e("s_barrier")
    e(f"s_cmp_lg_u32 s{sW}, 0")
    e("s_cbranch_scc1 L_end")
    R = vK
    for t in range(NW//2):
        e(f"ds_read_b128 {vr(R+4*t,4)}, v3 offset:{LDS_ACC + t*1024}")
    n = NW//2
    for t in range(1, n):
        e(f"s_waitcnt lgkmcnt({n-1-t})")
        e(f"v_pk_add_f32 {vr(R,2)}, {vr(R,2)}, {vr(R+4*t,2)}")
        e(f"v_pk_add_f32 {vr(R+2,2)}, {vr(R+2,2)}, {vr(R+4*t+2,2)}")
    for r in range(4):
        e(f"v_mov_b32 v{R+4+r}, v{R+r}")
    e("s_nop 1")
    for r in range(4):
        e(f"v_permlane32_swap_b32 v{R+r}, v{R+4+r}")
    e(f"v_pk_add_f32 {vr(R,2)}, {vr(R,2)}, {vr(R+4,2)}")
    e(f"v_pk_add_f32 {vr(R+2,2)}, {vr(R+2,2)}, {vr(R+6,2)}")
    e("s_mov_b32 exec_lo, 0")
    e(f"v_mov_b32 v{R}, v{vT}")
    e(f"v_mov_b32 v{R+1}, v{vY}")
    e("s_mov_b32 exec_lo, -1")
    e("s_mov_b32 exec_hi, 1")
    e(f"s_lshl_b32 s{sT0+4}, s2, 10")
    e(f"v_add_u32 v2, s{sT0+4}, v3")
    e(f"global_store_dwordx4 v2, {vr(R,4)}, s[{sWS}:{sWS+1}] sc1")
    e("s_mov_b64 exec, -1")
    e(f"s_lshl_b32 s{sT0+5}, s{sT0}, 2")
    e(f"v_mov_b32 v{R+8}, s{sT0+5}")
    e(f"v_mov_b32 v{R+9}, 1")
    e("s_mov_b64 exec, 1")
    e("s_waitcnt vmcnt(0)")
    e(f"global_atomic_add v{R+10}, v{R+8}, v{R+9}, s[{sD}:{sD+1}] sc0")
    e("s_waitcnt vmcnt(0)")
    e(f"v_readfirstlane_b32 s{sT0+6}, v{R+10}")
    e("s_mov_b64 exec, -1")
    e(f"s_cmp_lg_u32 s{sT0+6}, 3")
    e("s_cbranch_scc1 L_end")
    e(f"s_lshl_b32 s{sT0+4}, s{sT0}, 12")
    e(f"v_add_u32 v2, s{sT0+4}, v3")
    e(f"v_mov_b32 v3, s{sT0+4}")
    B = R + 12
    for s in range(4):
        e(f"global_load_dwordx2 {vr(B+16+2*s,2)}, v3, s[{sWS}:{sWS+1}] offset:{s*1024+512} sc1")
    for s in range(4):
        e(f"global_load_dwordx4 {vr(B+4*s,4)}, v2, s[{sWS}:{sWS+1}] offset:{s*1024} sc1")
    Mx = R; F = R + 4; L = R + 8
    e("s_waitcnt vmcnt(4)")
    e(f"v_max3_f32 v{Mx}, v{B+16}, v{B+18}, v{B+20}")
    e(f"v_max_f32 v{Mx}, v{Mx}, v{B+22}")
    for s in range(4):
        e(f"v_sub_f32 v{F+s}, v{B+16+2*s}, v{Mx}")
    for s in range(4):
        e(f"v_exp_f32 v{F+s}, v{F+s}")
    e("s_nop 0")
    e(f"v_mul_f32 v{L}, v{F}, v{B+17}")
    for s in range(1, 4):
        e(f"v_fmac_f32 v{L}, v{F+s}, v{B+17+2*s}")
    e(f"v_rcp_f32 v{L}, v{L}")
    e("s_nop 0")
    for s in range(4):
        e(f"v_mul_f32 v{F+s}, v{F+s}, v{L}")
    e("s_waitcnt vmcnt(0)")
    for r in range(4):
        e(f"v_mul_f32 v{Mx+r if False else R+40+r}, v{F}, v{B+r}")
    for s in range(1, 4):
        for r in range(4):
            e(f"v_fmac_f32 v{R+40+r}, v{F+s}, v{B+4*s+r}")
    e(f"v_cvt_pk_bf16_f32 v{R+44}, v{R+40}, v{R+41}")
    e(f"v_cvt_pk_bf16_f32 v{R+45}, v{R+42}, v{R+43}")
    e(f"v_and_b32 v2, 15, v0")
    e(f"v_lshlrev_b32 v2, 4, v2")
    e(f"v_lshrrev_b32 v3, 4, v0")
    e(f"v_lshlrev_b32 v3, 3, v3")
    e(f"v_add3_u32 v2, v2, v3, s{sT0+1}")
    e("s_mov_b32 exec_hi, 0")
    e(f"global_store_dwordx2 v2, {vr(R+44,2)}, s[{sO}:{sO+1}]")
    e.label("L_end")
    e("s_endpgm")
    nv = max(nvgpr, R + 46)
    nv = (nv + 7)//8*8
    name = "standalone__gqa_softmax__decode_kernel"
    out = HEADER + f"; @launch grid=(256,1,1) block=({NW*64},1,1) lds={lds_bytes}\n"
    out += f""".amdgcn_target "amdgcn-amd-amdhsa--gfx950"
.text
.globl {name}
.p2align 8
.type {name},@function
{name}:
""" + e.text() + f""".section .rodata,"a"
.p2align 6
.amdhsa_kernel {name}
  .amdhsa_next_free_vgpr {nv}
  .amdhsa_next_free_sgpr 64
  .amdhsa_accum_offset {nv}
  .amdhsa_group_segment_fixed_size 0
  .amdhsa_kernarg_size 48
  .amdhsa_user_sgpr_count 2
  .amdhsa_user_sgpr_kernarg_segment_ptr 1
  .amdhsa_system_sgpr_workgroup_id_x 1
  .amdhsa_float_denorm_mode_32 3
.end_amdhsa_kernel
"""
    return out

def f32hex(x):
    import struct
    return struct.unpack("<I", struct.pack("<f", x))[0]

if __name__ == "__main__":
    ap = argparse.ArgumentParser()
    ap.add_argument("--nw", type=int, default=16)
    ap.add_argument("--v1", type=int, default=None)
    ap.add_argument("--ld", default="nt")
    ap.add_argument("--contig", action="store_true")
    ap.add_argument("--nobar", action="store_true")
    ap.add_argument("-o", default="/dev/stdout")
    a = ap.parse_args()
    open(a.o, "w").write(gen(a.nw, a.v1, a.ld, not a.contig, not a.nobar))
```

```python
import sys, argparse

HEADER = """; Kernarg layout for this problem (48 bytes, ptrs only, base s[0:1]):
"""

class E:
    def __init__(self): self.l = []
    def __call__(self, s): self.l.append("    " + s)
    def label(self, s): self.l.append(s + ":")
    def c(self, s): self.l.append("    ; " + s)
    def text(self): return "\n".join(self.l) + "\n"

def vr(a, n=1):
    return f"v{a}" if n == 1 else f"v[{a}:{a+n-1}]"

def gen(NW=16, V1=None, ld="nt", interleave=True, order_barrier=True, stamps=False, prepass=0):
    KPW = 1024 // NW
    NT = KPW // 16
    NL = NT * 4
    if V1 is None: V1 = NL // 2
    assert V1 % 4 == 0 and V1 <= NL
    V2 = NL - V1
    ldf = (" " + ld) if ld else ""
    e = E()
    vTID = 0; vOFF = 1; vQ = 4
    vP = 8
    vX = 12
    vY = 14; vT = 15
    vS = 16
    base = vS + NT
    base = (base + 3) // 4 * 4
    vK = base
    vV1 = vK + NL * 4
    vend = vV1 + V1 * 4
    free = vK + V2 * 4
    nfree = NL * 4 - V2 * 4
    extra = 0
    need = 4 + 8 + 4
    if nfree < need:
        free = vend; vend += need
    vM = free; vA = free + 4; vACC = free + 12
    nvgpr = vend
    tile_stride = NW * 4096 if interleave else 4096
    wave_stride = 4096 if interleave else KPW * 256
    sQ = 4; sKp = 6; sVp = 8; sO = 10; sD = 12; sWS = 14
    sSRDK = 16; sSRDV = 20; sW = 24; sT0 = 25
    sTile = 32
    LDS_MAX = 0; LDS_L = 256; LDS_ACC = 512
    lds_bytes = LDS_ACC + NW * 512

    def stamp(i):
        if stamps:
            e(f"s_memrealtime s[{40+2*i}:{41+2*i}]")
            if i: e("s_waitcnt lgkmcnt(0)")
    stamp(0)
    e("s_cmp_ge_u32 s2, 256")
    e("s_cbranch_scc1 L_end")
    e("s_load_dwordx4 s[4:7], s[0:1], 0")
    e("s_load_dwordx4 s[8:11], s[0:1], 16")
    e("s_load_dwordx4 s[12:15], s[0:1], 32")
    e(f"v_lshrrev_b32 v2, 6, v0")
    e(f"v_and_b32 v3, 63, v0")
    e(f"v_readfirstlane_b32 s{sW}, v2")
    e(f"v_lshlrev_b32 v{vOFF}, 4, v3")
    e(f"v_mul_u32_u24 v2, {wave_stride}, v2")
    e(f"v_add_u32 v{vOFF}, v{vOFF}, v2")
    e(f"v_and_b32 v2, 15, v0")
    e(f"v_lshlrev_b32 v2, 4, v2")
    e(f"s_lshr_b32 s{sT0}, s2, 2")
    e(f"s_lshl_b32 s{sT0+1}, s{sT0}, 8")
    e(f"v_add_u32 v2, s{sT0+1}, v2")
    for t in range(NT):
        e(f"s_mov_b32 s{sTile+t}, {t*tile_stride}")
    e(f"s_lshl_b32 s{sT0+2}, s2, 18")
    e(f"s_mov_b32 s{sSRDK+2}, 0x40000")
    e(f"s_mov_b32 s{sSRDK+3}, 0x20000")
    e(f"s_mov_b32 s{sSRDV+2}, 0x40000")
    e(f"s_mov_b32 s{sSRDV+3}, 0x20000")
    e("s_waitcnt lgkmcnt(0)")
    stamp(1)
    e(f"s_add_u32 s{sSRDK}, s{sKp}, s{sT0+2}")
    e(f"s_addc_u32 s{sSRDK+1}, s{sKp+1}, 0")
    e(f"s_add_u32 s{sSRDV}, s{sVp}, s{sT0+2}")
    e(f"s_addc_u32 s{sSRDV+1}, s{sVp+1}, 0")
    e(f"global_load_dwordx4 {vr(vQ,4)}, v2, s[{sQ}:{sQ+1}]")
    def ldK(n):
        t, j = divmod(n, 4)
        e(f"buffer_load_dwordx4 {vr(vK+4*n,4)}, v{vOFF}, s[{sSRDK}:{sSRDK+3}], s{sTile+t} offen offset:{j*1024}{ldf}")
    def vreg(n):
        return vV1 + 4*n if n < V1 else vK + 4*(n - V1)
    def ldV(n):
        t, j = divmod(n, 4)
        e(f"buffer_load_dwordx4 {vr(vreg(n),4)}, v{vOFF}, s[{sSRDV}:{sSRDV+3}], s{sTile+t} offen offset:{j*1024}{ldf}")
    for pp in range(prepass):
        for n in range(NL): ldK(n)
        e("s_waitcnt vmcnt(0)")
        for n in range(NL):
            t, j = divmod(n, 4)
            e(f"buffer_load_dwordx4 {vr(vK+4*n,4)}, v{vOFF}, s[{sSRDV}:{sSRDV+3}], s{sTile+t} offen offset:{j*1024}{ldf}")
        e("s_waitcnt vmcnt(0)")
        e("s_barrier")
    if prepass: e(f"global_load_dwordx4 {vr(vQ,4)}, v2, s[{sQ}:{sQ+1}]")
    for n in range(NL): ldK(n)
    if order_barrier: e("s_barrier")
    for n in range(V1): ldV(n)
    stamp(2)
    issued = 1 + NL + V1
    nextV = V1
    for t in range(NT):
        need_done = 1 + 4*(t+1)
        e(f"s_waitcnt vmcnt({issued - need_done})")
        kb = vK + 16*t
        for c in range(4):
            for j in range(4):
                src2 = "0" if c == 0 else f"v{vP+j}"
                e(f"v_dot2_f32_bf16 v{vP+j}, v{kb+4*j+c}, v{vQ+c}, {src2}")
        if nextV < NL and (nextV - V1) // 4 <= t:
            for _ in range(4):
                ldV(nextV); nextV += 1; issued += 1
        else:
            e("s_nop 2")
        e(f"v_add_f32_dpp v{vX}, v{vP}, v{vP} row_ror:8 row_mask:0xf bank_mask:0x3")
        e(f"v_add_f32_dpp v{vX+1}, v{vP+2}, v{vP+2} row_ror:8 row_mask:0xf bank_mask:0x3")
        e(f"v_add_f32_dpp v{vX}, v{vP+1}, v{vP+1} row_ror:8 row_mask:0xf bank_mask:0xc")
        e(f"v_add_f32_dpp v{vX+1}, v{vP+3}, v{vP+3} row_ror:8 row_mask:0xf bank_mask:0xc")
        e("s_nop 0")
        e(f"v_add_f32_dpp v{vY}, v{vX}, v{vX} row_half_mirror row_mask:0xf bank_mask:0x5")
        e(f"v_add_f32_dpp v{vY}, v{vX+1}, v{vX+1} row_half_mirror row_mask:0xf bank_mask:0xa")
        e("s_nop 1")
        e(f"v_add_f32_dpp v{vY}, v{vY}, v{vY} quad_perm:[1,0,3,2] row_mask:0xf bank_mask:0xf")
        e("s_nop 1")
        e(f"v_add_f32_dpp v{vS+t}, v{vY}, v{vY} quad_perm:[2,3,0,1] row_mask:0xf bank_mask:0xf")
    assert nextV == NL, (nextV, NL)
    stamp(3)
    e(f"v_max_f32 v{vT}, v{vS}, v{vS+1}")
    for t in range(2, NT, 2):
        e(f"v_max3_f32 v{vT}, v{vT}, v{vS+t}, v{vS+t+1}")
    e("s_nop 1")
    e(f"v_max_f32_dpp v{vT}, v{vT}, v{vT} row_ror:4 row_mask:0xf bank_mask:0xf")
    e("s_nop 1")
    e(f"v_max_f32_dpp v{vT}, v{vT}, v{vT} row_ror:8 row_mask:0xf bank_mask:0xf")
    e(f"v_lshrrev_b32 v2, 4, v0")
    e(f"v_lshlrev_b32 v2, 2, v2")
    e(f"ds_write_b32 v2, v{vT} offset:{LDS_MAX}")
    e(f"v_and_b32 v3, 15, v0")
    e(f"v_and_b32 v{vX}, 1, v3")
    e(f"v_mov_b32 v{vX+1}, 0xffff")
    e(f"v_lshlrev_b32 v{vX}, 4, v{vX}")
    e(f"v_lshlrev_b32 v{vX}, v{vX}, v{vX+1}")
    e(f"v_lshrrev_b32 v{vX+1}, 1, v3")
    for r in range(4):
        e(f"v_cmp_eq_u32 vcc, {r}, v{vX+1}")
        e("s_nop 1")
        e(f"v_cndmask_b32 v{vM+r}, 0, v{vX}, vcc")
    for r in range(4):
        e(f"v_mov_b32 v{vACC+r}, 0")
    e(f"v_and_b32 v3, {NW-1}, v0")
    e(f"v_lshlrev_b32 v3, 4, v3")
    e("s_waitcnt lgkmcnt(0)")
    e("s_barrier")
    e(f"ds_read_b128 {vr(vP,4)}, v3 offset:{LDS_MAX}")
    e("s_waitcnt lgkmcnt(0)")
    e(f"v_max3_f32 v{vT}, v{vP}, v{vP+1}, v{vP+2}")
    e(f"v_max_f32 v{vT}, v{vT}, v{vP+3}")
    sh = 1
    while sh < NW:
        e("s_nop 1")
        e(f"v_max_f32_dpp v{vT}, v{vT}, v{vT} row_ror:{sh} row_mask:0xf bank_mask:0xf")
        sh *= 2
    import math
    e(f"s_mov_b32 s{sT0+3}, 0x{f32hex(128**-0.5 * math.log2(math.e)):08x}")
    e(f"v_mul_f32 v{vT}, s{sT0+3}, v{vT}")
    for t in range(NT):
        e(f"v_fma_f32 v{vS+t}, v{vS+t}, s{sT0+3}, -v{vT}")
    for t in range(NT):
        e(f"v_exp_f32 v{vS+t}, v{vS+t}")
    e("s_nop 0")
    e(f"v_add_f32 v{vY}, v{vS}, v{vS+1}")
    for t in range(2, NT):
        e(f"v_add_f32 v{vY}, v{vY}, v{vS+t}")
    for t in range(NT):
        e(f"v_cvt_pk_bf16_f32 v{vS+t}, v{vS+t}, v{vS+t}")
    e(f"v_add_f32_dpp v{vY}, v{vY}, v{vY} row_ror:4 row_mask:0xf bank_mask:0xf")
    e("s_nop 1")
    e(f"v_add_f32_dpp v{vY}, v{vY}, v{vY} row_ror:8 row_mask:0xf bank_mask:0xf")
    e("s_nop 0")
    e(f"ds_write_b32 v2, v{vY} offset:{LDS_L}")
    e("s_waitcnt lgkmcnt(0)")
    e("s_barrier")
    e(f"ds_read_b128 {vr(vP,4)}, v3 offset:{LDS_L}")
    e("s_waitcnt lgkmcnt(0)")
    e(f"v_add_f32 v{vP}, v{vP}, v{vP+1}")
    e(f"v_add_f32 v{vP+2}, v{vP+2}, v{vP+3}")
    e(f"v_add_f32 v{vY}, v{vP}, v{vP+2}")
    sh = 1
    while sh < NW:
        e("s_nop 1")
        e(f"v_add_f32_dpp v{vY}, v{vY}, v{vY} row_ror:{sh} row_mask:0xf bank_mask:0xf")
        sh *= 2
    stamp(4)
    bank_of_j = {0: 0, 2: 1, 1: 2, 3: 3}
    for n in range(NL):
        t, j = divmod(n, 4)
        a = vA + 4*(n & 1)
        for r in range(4):
            e(f"v_and_b32_dpp v{a+r}, v{vS+t}, v{vM+r} row_newbcast:{4*bank_of_j[j]} row_mask:0xf bank_mask:0xf")
        e(f"s_waitcnt vmcnt({NL-1-n})")
        e("s_nop 0")
        e(f"v_mfma_f32_16x16x32_bf16 {vr(vACC,4)}, {vr(a,4)}, {vr(vreg(n),4)}, {vr(vACC,4)}")
    e(f"v_and_b32 v3, 63, v0")
    e(f"v_lshlrev_b32 v3, 4, v3")
    e(f"s_lshl_b32 s{sT0+4}, s{sW}, 9")
    e(f"v_add_u32 v2, s{sT0+4}, v3")
    e("s_mov_b32 exec_hi, 0")
    e("s_nop 4")
    e(f"ds_write_b128 v2, {vr(vACC,4)} offset:{LDS_ACC}")
    e("s_mov_b64 exec, -1")
    e("s_waitcnt lgkmcnt(0)")
    e("s_barrier")
    e(f"s_cmp_lg_u32 s{sW}, 0")
    e("s_cbranch_scc1 L_end")
    stamp(5)
    R = vK
    for t in range(NW//2):
        e(f"ds_read_b128 {vr(R+4*t,4)}, v3 offset:{LDS_ACC + t*1024}")
    n = NW//2
    for t in range(1, n):
        e(f"s_waitcnt lgkmcnt({n-1-t})")
        e(f"v_pk_add_f32 {vr(R,2)}, {vr(R,2)}, {vr(R+4*t,2)}")
        e(f"v_pk_add_f32 {vr(R+2,2)}, {vr(R+2,2)}, {vr(R+4*t+2,2)}")
    for r in range(4):
        e(f"v_mov_b32 v{R+4+r}, v{R+r}")
    e("s_nop 1")
    for r in range(4):
        e(f"v_permlane32_swap_b32 v{R+r}, v{R+4+r}")
    e(f"v_pk_add_f32 {vr(R,2)}, {vr(R,2)}, {vr(R+4,2)}")
    e(f"v_pk_add_f32 {vr(R+2,2)}, {vr(R+2,2)}, {vr(R+6,2)}")
    e("s_mov_b32 exec_lo, 0")
    e(f"v_mov_b32 v{R}, v{vT}")
    e(f"v_mov_b32 v{R+1}, v{vY}")
    e("s_mov_b32 exec_lo, -1")
    e("s_mov_b32 exec_hi, 1")
    e(f"s_lshl_b32 s{sT0+4}, s2, 10")
    e(f"v_add_u32 v2, s{sT0+4}, v3")
    e(f"global_store_dwordx4 v2, {vr(R,4)}, s[{sWS}:{sWS+1}] sc1")
    e("s_mov_b64 exec, -1")
    e(f"s_lshl_b32 s{sT0+5}, s{sT0}, 2")
    e(f"v_mov_b32 v{R+8}, s{sT0+5}")
    e(f"v_mov_b32 v{R+9}, 1")
    e("s_mov_b64 exec, 1")
    e("s_waitcnt vmcnt(0)")
    e(f"global_atomic_add v{R+10}, v{R+8}, v{R+9}, s[{sD}:{sD+1}] sc0")
    e("s_waitcnt vmcnt(0)")
    e(f"v_readfirstlane_b32 s{sT0+6}, v{R+10}")
    e("s_mov_b64 exec, -1")
    if stamps:
        stamp(6)
        e("s_waitcnt lgkmcnt(0)")
        e(f"s_lshl_b32 s{sT0+4}, s2, 6")
        e(f"s_add_u32 s{sT0+4}, s{sT0+4}, 0x4000000")
        e(f"v_mov_b32 v2, s{sT0+4}")
        for i in range(7):
            e(f"v_mov_b32 v{R+12+i}, s{40+2*i}")
        e(f"v_mov_b32 v{R+12+7}, s{sT0+6}")
        e(f"global_store_dwordx4 v2, {vr(R+12,4)}, s[{sWS}:{sWS+1}]")
        e(f"global_store_dwordx4 v2, {vr(R+16,4)}, s[{sWS}:{sWS+1}] offset:16")
        e("s_nop 1")
    e(f"s_cmp_lg_u32 s{sT0+6}, 3")
    e("s_cbranch_scc1 L_end")
    e(f"s_lshl_b32 s{sT0+4}, s{sT0}, 12")
    e(f"v_add_u32 v2, s{sT0+4}, v3")
    e(f"v_mov_b32 v3, s{sT0+4}")
    B = R + 12
    for s in range(4):
        e(f"global_load_dwordx2 {vr(B+16+2*s,2)}, v3, s[{sWS}:{sWS+1}] offset:{s*1024+512} sc1")
    for s in range(4):
        e(f"global_load_dwordx4 {vr(B+4*s,4)}, v2, s[{sWS}:{sWS+1}] offset:{s*1024} sc1")
    Mx = R; F = R + 4; L = R + 8
    e("s_waitcnt vmcnt(4)")
    e(f"v_max3_f32 v{Mx}, v{B+16}, v{B+18}, v{B+20}")
    e(f"v_max_f32 v{Mx}, v{Mx}, v{B+22}")
    for s in range(4):
        e(f"v_sub_f32 v{F+s}, v{B+16+2*s}, v{Mx}")
    for s in range(4):
        e(f"v_exp_f32 v{F+s}, v{F+s}")
    e("s_nop 0")
    e(f"v_mul_f32 v{L}, v{F}, v{B+17}")
    for s in range(1, 4):
        e(f"v_fmac_f32 v{L}, v{F+s}, v{B+17+2*s}")
    e(f"v_rcp_f32 v{L}, v{L}")
    e("s_nop 0")
    for s in range(4):
        e(f"v_mul_f32 v{F+s}, v{F+s}, v{L}")
    e("s_waitcnt vmcnt(0)")
    for r in range(4):
        e(f"v_mul_f32 v{Mx+r if False else R+40+r}, v{F}, v{B+r}")
    for s in range(1, 4):
        for r in range(4):
            e(f"v_fmac_f32 v{R+40+r}, v{F+s}, v{B+4*s+r}")
    e(f"v_cvt_pk_bf16_f32 v{R+44}, v{R+40}, v{R+41}")
    e(f"v_cvt_pk_bf16_f32 v{R+45}, v{R+42}, v{R+43}")
    e(f"v_and_b32 v2, 15, v0")
    e(f"v_lshlrev_b32 v2, 4, v2")
    e(f"v_lshrrev_b32 v3, 4, v0")
    e(f"v_lshlrev_b32 v3, 3, v3")
    e(f"v_add3_u32 v2, v2, v3, s{sT0+1}")
    e("s_mov_b32 exec_hi, 0")
    e(f"global_store_dwordx2 v2, {vr(R+44,2)}, s[{sO}:{sO+1}]")
    if stamps:
        e("s_waitcnt vmcnt(0)")
        stamp(7)
        e("s_waitcnt lgkmcnt(0)")
        e(f"s_lshl_b32 s{sT0+4}, s2, 6")
        e(f"s_add_u32 s{sT0+4}, s{sT0+4}, 0x4000000")
        e(f"v_mov_b32 v2, s{sT0+4}")
        e(f"v_mov_b32 v3, s54")
        e(f"global_store_dword v2, v3, s[{sWS}:{sWS+1}] offset:32")
    e.label("L_end")
    e("s_endpgm")
    nv = max(nvgpr, R + 46)
    nv = (nv + 7)//8*8
    name = "standalone__gqa_softmax__decode_kernel"
    out = HEADER + f"; @launch grid=(256,1,1) block=({NW*64},1,1) lds={lds_bytes}\n"
    out += f""".amdgcn_target "amdgcn-amd-amdhsa--gfx950"
.text
.globl {name}
.p2align 8
.type {name},@function
{name}:
""" + e.text() + f""".section .rodata,"a"
.p2align 6
.amdhsa_kernel {name}
  .amdhsa_next_free_vgpr {nv}
  .amdhsa_next_free_sgpr 64
  .amdhsa_accum_offset {nv}
  .amdhsa_group_segment_fixed_size 0
  .amdhsa_kernarg_size 48
  .amdhsa_user_sgpr_count 2
  .amdhsa_user_sgpr_kernarg_segment_ptr 1
  .amdhsa_system_sgpr_workgroup_id_x 1
  .amdhsa_float_denorm_mode_32 3
.end_amdhsa_kernel
"""
    return out

def f32hex(x):
    import struct
    return struct.unpack("<I", struct.pack("<f", x))[0]

if __name__ == "__main__":
    ap = argparse.ArgumentParser()
    ap.add_argument("--nw", type=int, default=16)
    ap.add_argument("--v1", type=int, default=None)
    ap.add_argument("--ld", default="nt")
    ap.add_argument("--contig", action="store_true")
    ap.add_argument("--nobar", action="store_true")
    ap.add_argument("--stamps", action="store_true")
    ap.add_argument("--prepass", type=int, default=0)
    ap.add_argument("-o", default="/dev/stdout")
    a = ap.parse_args()
    open(a.o, "w").write(gen(a.nw, a.v1, a.ld, not a.contig, not a.nobar, a.stamps, a.prepass))
```

```python
import argparse, math, struct
NAME = "standalone__gqa_softmax__decode_kernel"
HEADER = """; Kernarg layout for this problem (48 bytes, ptrs only, base s[0:1]):
"""
def f32hex(x): return struct.unpack("<I", struct.pack("<f", x))[0]
def vr(a, n=1): return f"v{a}" if n == 1 else f"v[{a}:{a+n-1}]"
class E:
    def __init__(self): self.l = []
    def __call__(self, s): self.l.append("    " + s)
    def label(self, s): self.l.append(s + ":")
    def c(self, s): self.l.append("    ; " + s)
    def text(self): return "\n".join(self.l) + "\n"
DPP = "row_mask:0xf bank_mask:0xf"

def gen(D=5, pat="Ph", ld="nt", stamps=False, nvgpr=512, tail="atomic"):
    NW = 4; N = 16
    assert 4 <= D <= 7
    ldf = (" " + ld) if ld else ""
    e = E()
    vO0, vO1, vO2 = 1, 2, 3
    vQ = 4
    vP = 8
    vX = 12; vY = 14; vS = 15
    vMx = 16; vMc = 17; vL = 18; vPD = 19
    vM = 20
    vA = 24
    vACC = 32
    vT = 36; vU = 37; vW = 38; vZ = 39
    vR = 40
    vF = 72
    slot = lambda k: vR + 4*k
    sQ, sKp, sVp, sO, sD, sWS = 4, 6, 8, 10, 12, 14
    sSK, sSV = 16, 20
    sW, sHead, sHeadB, sTmp, sC, sT = 24, 25, 26, 27, 28, 29
    LDS_M, LDS_L, LDS_ACC = 0, 16, 64
    lds_bytes = LDS_ACC + NW*512
    if pat == "Ph":   split_stride, tile_stride = 16384, 65536
    elif pat == "Pb": split_stride, tile_stride = 262144, 16384
    def stamp(i):
        if stamps:
            e(f"s_memrealtime s[{40+2*i}:{41+2*i}]")
            if i: e("s_waitcnt lgkmcnt(0)")
    def ld_(srd, voff, j, sl, soff):
        e(f"buffer_load_dwordx4 {vr(slot(sl),4)}, v{voff}, s[{srd}:{srd+3}], {soff} offen offset:{j*1024}{ldf}")
    def dots(j, sl):
        for c in range(4):
            src2 = "0" if c == 0 else f"v{vP+j}"
            e(f"v_dot2_f32_bf16 v{vP+j}, v{slot(sl)+c}, v{vQ+c}, {src2}")
    def reduce_scores():
        e("s_nop 2")
        e(f"v_add_f32_dpp v{vX}, v{vP}, v{vP} row_ror:8 row_mask:0xf bank_mask:0x3")
        e(f"v_add_f32_dpp v{vX+1}, v{vP+2}, v{vP+2} row_ror:8 row_mask:0xf bank_mask:0x3")
        e(f"v_add_f32_dpp v{vX}, v{vP+1}, v{vP+1} row_ror:8 row_mask:0xf bank_mask:0xc")
        e(f"v_add_f32_dpp v{vX+1}, v{vP+3}, v{vP+3} row_ror:8 row_mask:0xf bank_mask:0xc")
        e("s_nop 0")
        e(f"v_add_f32_dpp v{vY}, v{vX}, v{vX} row_half_mirror row_mask:0xf bank_mask:0x5")
        e(f"v_add_f32_dpp v{vY}, v{vX+1}, v{vX+1} row_half_mirror row_mask:0xf bank_mask:0xa")
        e("s_nop 1")
        e(f"v_add_f32_dpp v{vY}, v{vY}, v{vY} quad_perm:[1,0,3,2] {DPP}")
        e("s_nop 1")
        e(f"v_add_f32_dpp v{vS}, v{vY}, v{vY} quad_perm:[2,3,0,1] {DPP}")
    def wave_reduce(op, dst, src):
        e("s_nop 1")
        e(f"{op}_dpp v{dst}, v{src}, v{src} row_ror:4 {DPP}")
        e("s_nop 1")
        e(f"{op}_dpp v{dst}, v{dst}, v{dst} row_ror:8 {DPP}")
        e("s_nop 0")
        e(f"v_mov_b32 v{vU}, v{dst}")
        e("s_nop 1")
        e(f"v_permlane16_swap_b32 v{dst}, v{vU}")
        e(f"{op} v{dst}, v{dst}, v{vU}")
        e("s_nop 0")
        e(f"v_mov_b32 v{vU}, v{dst}")
        e("s_nop 1")
        e(f"v_permlane32_swap_b32 v{dst}, v{vU}")
        e(f"{op} v{dst}, v{dst}, v{vU}")
    bank_of_j = {0: 0, 2: 1, 1: 2, 3: 3}
    def a_operand(j, k):
        a = vA + 4*(k & 1)
        for r in range(4):
            e(f"v_and_b32_dpp v{a+r}, v{vPD}, v{vM+r} row_newbcast:{4*bank_of_j[j]} {DPP}")
        return a
    def mfma(a, sl):
        e(f"v_mfma_f32_16x16x32_bf16 {vr(vACC,4)}, {vr(a,4)}, {vr(slot(sl),4)}, {vr(vACC,4)}")
    def softmax_p():
        e(f"v_fma_f32 v{vW}, v{vS}, s{sC}, -v{vMc}")
        e(f"v_exp_f32 v{vW}, v{vW}")
        e("s_nop 0")
        e(f"v_add_f32 v{vL}, v{vL}, v{vW}")
        e(f"v_cvt_pk_bf16_f32 v{vPD}, v{vW}, v{vW}")
    def rescale_to(vnew):
        e(f"v_sub_f32 v{vZ}, v{vMx}, v{vnew}")
        e(f"v_mul_f32 v{vZ}, s{sC}, v{vZ}")
        e(f"v_exp_f32 v{vZ}, v{vZ}")
        e(f"v_mov_b32 v{vMx}, v{vnew}")
        e(f"v_mul_f32 v{vMc}, s{sC}, v{vnew}")
        e(f"v_mul_f32 v{vL}, v{vL}, v{vZ}")
        for r in range(4): e(f"v_mul_f32 v{vACC+r}, v{vACC+r}, v{vZ}")

    stamp(0)
    e("s_cmp_ge_u32 s2, 256")
    e("s_cbranch_scc1 L_end")
    e("s_load_dwordx4 s[4:7], s[0:1], 0")
    e("s_load_dwordx4 s[8:11], s[0:1], 16")
    e("s_load_dwordx4 s[12:15], s[0:1], 32")
    e(f"v_lshrrev_b32 v{vT}, 6, v0")
    e(f"v_and_b32 v{vU}, 63, v0")
    e(f"v_readfirstlane_b32 s{sW}, v{vT}")
    e(f"v_lshlrev_b32 v{vO0}, 4, v{vU}")
    e(f"v_lshlrev_b32 v{vT}, 12, v{vT}")
    e(f"s_lshr_b32 s{sHead}, s2, 2")
    e(f"s_and_b32 s{sTmp}, s2, 3")
    e(f"s_mul_i32 s{sTmp}, s{sTmp}, {split_stride}")
    e(f"v_add3_u32 v{vO0}, v{vO0}, v{vT}, s{sTmp}")
    e(f"s_lshl_b32 s{sHeadB}, s{sHead}, 8")
    e(f"v_and_b32 v{vU}, 15, v0")
    e(f"v_lshlrev_b32 v{vU}, 4, v{vU}")
    e(f"v_add_u32 v{vU}, s{sHeadB}, v{vU}")
    e(f"v_add_u32 v{vO1}, {tile_stride}, v{vO0}")
    e(f"v_add_u32 v{vO2}, {2*tile_stride}, v{vO0}")
    e(f"s_lshl_b32 s{sTmp}, s{sHead}, 20")
    e(f"s_mov_b32 s{sSK+2}, 0x100000")
    e(f"s_mov_b32 s{sSK+3}, 0x20000")
    e(f"s_mov_b32 s{sSV+2}, 0x100000")
    e(f"s_mov_b32 s{sSV+3}, 0x20000")
    e(f"s_mov_b32 s{sT}, 0")
    e("s_waitcnt lgkmcnt(0)")
    stamp(1)
    e(f"s_add_u32 s{sSK}, s{sKp}, s{sTmp}")
    e(f"s_addc_u32 s{sSK+1}, s{sKp+1}, 0")
    e(f"s_add_u32 s{sSV}, s{sVp}, s{sTmp}")
    e(f"s_addc_u32 s{sSV+1}, s{sVp+1}, 0")
    e(f"global_load_dwordx4 {vr(vQ,4)}, v{vU}, s[{sQ}:{sQ+1}]")
    def issue_pro(idx):
        if idx < 4:   ld_(sSK, vO0, idx, 4+idx, "0")
        elif idx < 8: ld_(sSK, vO1, idx-4, idx-4, "0")
        else:         ld_(sSV, vO0, idx-8, 4+idx-8, "0")
    for idx in range(D): issue_pro(idx)
    e(f"s_mov_b32 s{sC}, 0x{f32hex(128**-0.5 * math.log2(math.e)):08x}")
    e(f"v_and_b32 v{vT}, 15, v0")
    e(f"v_and_b32 v{vX}, 1, v{vT}")
    e(f"v_mov_b32 v{vX+1}, 0xffff")
    e(f"v_lshlrev_b32 v{vX}, 4, v{vX}")
    e(f"v_lshlrev_b32 v{vX}, v{vX}, v{vX+1}")
    e(f"v_lshrrev_b32 v{vX+1}, 1, v{vT}")
    for r in range(4):
        e(f"v_cmp_eq_u32 vcc, {r}, v{vX+1}")
        e(f"v_mov_b32 v{vACC+r}, 0")
        e("s_nop 0")
        e(f"v_cndmask_b32 v{vM+r}, 0, v{vX}, vcc")
    for n in range(4):
        e(f"s_waitcnt vmcnt({D-1})")
        issue_pro(n + D)
        dots(n, 4+n)
    reduce_scores()
    wave_reduce("v_max_f32", vMx, vS)
    e(f"v_mul_f32 v{vMc}, s{sC}, v{vMx}")
    e(f"v_mov_b32 v{vL}, 0")
    softmax_p()
    stamp(2)
    def body(last):
        k = 0
        for p in range(8):
            q = p + D
            if p >= 4: a = a_operand(p-4, p)
            cnt = D-1 if not last else min(D-1, 11-p)
            e(f"s_waitcnt vmcnt({cnt})")
            issued = True
            if q < 8:    ld_(sSV, vO0, q-4, q, f"s{sT}")
            elif q < 12:
                if last: ld_(sSV, vO1, q-8, q-8, f"s{sT}")
                else:    ld_(sSK, vO2, q-8, q-8, f"s{sT}")
            elif not last: ld_(sSV, vO1, q-12, q-8, f"s{sT}")
            else: issued = False
            if p < 4:
                dots(p, p)
                if p == 3: reduce_scores()
            else:
                if not issued: e("s_nop 0")
                mfma(a, p)
    e.label("L_loop")
    body(False)
    e(f"v_cmp_gt_f32 vcc, v{vS}, v{vMx}")
    e(f"s_add_u32 s{sT}, s{sT}, {tile_stride}")
    e("s_cbranch_vccz L_nomax")
    wave_reduce("v_max_f32", vT, vS)
    e(f"v_max_f32 v{vT}, v{vT}, v{vMx}")
    rescale_to(vT)
    e.label("L_nomax")
    softmax_p()
    e(f"s_cmp_lt_u32 s{sT}, {(N-2)*tile_stride}")
    e("s_cbranch_scc1 L_loop")
    stamp(3)
    body(True)
    wave_reduce("v_max_f32", vT, vS)
    e(f"v_max_f32 v{vT}, v{vT}, v{vMx}")
    e(f"s_lshl_b32 s{sTmp}, s{sW}, 2")
    e(f"v_mov_b32 v{vU}, s{sTmp}")
    e(f"ds_write_b32 v{vU}, v{vT} offset:{LDS_M}")
    e(f"v_mov_b32 v{vW}, 0")
    e("s_waitcnt lgkmcnt(0)")
    e("s_barrier")
    e(f"ds_read_b128 {vr(vF,4)}, v{vW} offset:{LDS_M}")
    e("s_waitcnt lgkmcnt(0)")
    e(f"v_max3_f32 v{vT}, v{vF}, v{vF+1}, v{vF+2}")
    e(f"v_max_f32 v{vT}, v{vT}, v{vF+3}")
    rescale_to(vT)
    softmax_p()
    wave_reduce("v_add_f32", vT, vL)
    e(f"v_mov_b32 v{vU}, s{sTmp}")
    e(f"ds_write_b32 v{vU}, v{vT} offset:{LDS_L}")
    e(f"v_and_b32 v{vW}, 63, v0")
    e(f"v_lshlrev_b32 v{vW}, 4, v{vW}")
    e(f"s_lshl_b32 s{sTmp}, s{sW}, 9")
    e(f"v_add_u32 v{vZ}, s{sTmp}, v{vW}")
    for j in range(4):
        a = a_operand(j, j)
        e(f"s_waitcnt vmcnt({3-j})")
        e("s_nop 0")
        mfma(a, j)
    stamp(4)
    e("s_mov_b32 exec_hi, 0")
    e("s_nop 6")
    e(f"ds_write_b128 v{vZ}, {vr(vACC,4)} offset:{LDS_ACC}")
    e("s_waitcnt lgkmcnt(0)")
    e("s_barrier")
    e(f"s_cmp_lg_u32 s{sW}, 0")
    e("s_cbranch_scc1 L_end")
    stamp(5)
    R = vF
    for w in range(1, 4):
        e(f"ds_read_b128 {vr(R+4*w,4)}, v{vW} offset:{LDS_ACC + 512*w}")
    e(f"v_mov_b32 v{vU}, 0")
    e(f"ds_read_b128 {vr(R+16,4)}, v{vU} offset:{LDS_L}")
    e("s_waitcnt lgkmcnt(3)")
    e(f"v_pk_add_f32 {vr(vACC,2)}, {vr(vACC,2)}, {vr(R+4,2)}")
    e(f"v_pk_add_f32 {vr(vACC+2,2)}, {vr(vACC+2,2)}, {vr(R+6,2)}")
    e("s_waitcnt lgkmcnt(2)")
    e(f"v_pk_add_f32 {vr(vACC,2)}, {vr(vACC,2)}, {vr(R+8,2)}")
    e(f"v_pk_add_f32 {vr(vACC+2,2)}, {vr(vACC+2,2)}, {vr(R+10,2)}")
    e("s_waitcnt lgkmcnt(1)")
    e(f"v_pk_add_f32 {vr(vACC,2)}, {vr(vACC,2)}, {vr(R+12,2)}")
    e(f"v_pk_add_f32 {vr(vACC+2,2)}, {vr(vACC+2,2)}, {vr(R+14,2)}")
    e("s_waitcnt lgkmcnt(0)")
    e(f"v_add_f32 v{R+16}, v{R+16}, v{R+17}")
    e(f"v_add_f32 v{R+18}, v{R+18}, v{R+19}")
    e(f"v_add_f32 v{vL}, v{R+16}, v{R+18}")
    e(f"s_lshl_b32 s{sTmp}, s2, 10")
    e(f"v_add_u32 v{vU}, s{sTmp}, v{vW}")
    e(f"global_store_dwordx4 v{vU}, {vr(vACC,4)}, s[{sWS}:{sWS+1}] sc1")
    e(f"v_mov_b32 v{R}, v{vMc}")
    e(f"v_mov_b32 v{R+1}, v{vL}")
    e(f"v_mov_b32 v{vU}, s{sTmp}")
    e(f"s_lshl_b32 s{sTmp}, s{sHead}, 2")
    e(f"v_mov_b32 v{R+2}, s{sTmp}")
    e(f"v_mov_b32 v{R+3}, 1")
    e("s_mov_b32 exec_lo, 1")
    e(f"global_store_dwordx2 v{vU}, {vr(R,2)}, s[{sWS}:{sWS+1}] offset:512 sc1")
    e("s_waitcnt vmcnt(0)")
    e(f"global_atomic_add v{R+4}, v{R+2}, v{R+3}, s[{sD}:{sD+1}] sc0")
    e("s_waitcnt vmcnt(0)")
    e(f"v_readfirstlane_b32 s{sTmp}, v{R+4}")
    e("s_mov_b32 exec_lo, -1")
    if stamps:
        stamp(6)
        e(f"s_lshl_b32 s30, s2, 6")
        e(f"s_add_u32 s30, s30, 0x4000000")
        e(f"v_mov_b32 v{vT}, s30")
        for i in range(7): e(f"v_mov_b32 v{R+8+i}, s{40+2*i}")
        e(f"v_mov_b32 v{R+8+7}, s{sTmp}")
        e(f"global_store_dwordx4 v{vT}, {vr(R+8,4)}, s[{sWS}:{sWS+1}]")
        e(f"global_store_dwordx4 v{vT}, {vr(R+12,4)}, s[{sWS}:{sWS+1}] offset:16")
        e("s_nop 1")
    e(f"s_cmp_lg_u32 s{sTmp}, 3")
    e("s_cbranch_scc1 L_end")
    e(f"s_lshl_b32 s{sTmp}, s{sHead}, 12")
    e(f"v_add_u32 v{vU}, s{sTmp}, v{vW}")
    e(f"v_mov_b32 v{vT}, s{sTmp}")
    B = R + 16
    for s in range(4):
        e(f"global_load_dwordx2 {vr(B+16+2*s,2)}, v{vT}, s[{sWS}:{sWS+1}] offset:{s*1024+512} sc1")
    for s in range(4):
        e(f"global_load_dwordx4 {vr(B+4*s,4)}, v{vU}, s[{sWS}:{sWS+1}] offset:{s*1024} sc1")
    Mx, F, L, O = R, R+4, R+8, R+12
    e("s_waitcnt vmcnt(4)")
    e(f"v_max3_f32 v{Mx}, v{B+16}, v{B+18}, v{B+20}")
    e(f"v_max_f32 v{Mx}, v{Mx}, v{B+22}")
    for s in range(4): e(f"v_sub_f32 v{F+s}, v{B+16+2*s}, v{Mx}")
    for s in range(4): e(f"v_exp_f32 v{F+s}, v{F+s}")
    e("s_nop 0")
    e(f"v_mul_f32 v{L}, v{F}, v{B+17}")
    for s in range(1, 4): e(f"v_fmac_f32 v{L}, v{F+s}, v{B+17+2*s}")
    e(f"v_rcp_f32 v{L}, v{L}")
    e("s_nop 0")
    for s in range(4): e(f"v_mul_f32 v{F+s}, v{F+s}, v{L}")
    e("s_waitcnt vmcnt(0)")
    for r in range(4): e(f"v_mul_f32 v{O+r}, v{F}, v{B+r}")
    for s in range(1, 4):
        for r in range(4): e(f"v_fmac_f32 v{O+r}, v{F+s}, v{B+4*s+r}")
    e(f"v_cvt_pk_bf16_f32 v{R}, v{O}, v{O+1}")
    e(f"v_cvt_pk_bf16_f32 v{R+1}, v{O+2}, v{O+3}")
    e(f"v_and_b32 v{vT}, 15, v0")
    e(f"v_lshlrev_b32 v{vT}, 4, v{vT}")
    e(f"v_lshrrev_b32 v{vU}, 4, v0")
    e(f"v_lshlrev_b32 v{vU}, 3, v{vU}")
    e(f"v_add3_u32 v{vT}, v{vT}, v{vU}, s{sHeadB}")
    e(f"global_store_dwordx2 v{vT}, {vr(R,2)}, s[{sO}:{sO+1}]")
    if stamps:
        e("s_waitcnt vmcnt(0)")
        stamp(7)
        e(f"v_mov_b32 v{vT}, s30")
        e(f"v_mov_b32 v{vU}, s54")
        e(f"global_store_dword v{vT}, v{vU}, s[{sWS}:{sWS+1}] offset:32")
    e.label("L_end")
    e("s_endpgm")
    acc_off = min(256, nvgpr)
    out = HEADER + f"; @launch grid=(256,1,1) block=({NW*64},1,1) lds={lds_bytes}\n"
    out += f""".amdgcn_target "amdgcn-amd-amdhsa--gfx950"
.text
.globl {NAME}
.p2align 8
.type {NAME},@function
{NAME}:
""" + e.text() + f""".section .rodata,"a"
.p2align 6
.amdhsa_kernel {NAME}
  .amdhsa_next_free_vgpr {nvgpr}
  .amdhsa_next_free_sgpr 64
  .amdhsa_accum_offset {acc_off}
  .amdhsa_group_segment_fixed_size 0
  .amdhsa_kernarg_size 48
  .amdhsa_user_sgpr_count 2
  .amdhsa_user_sgpr_kernarg_segment_ptr 1
  .amdhsa_system_sgpr_workgroup_id_x 1
  .amdhsa_float_denorm_mode_32 3
.end_amdhsa_kernel
"""
    return out

if __name__ == "__main__":
    ap = argparse.ArgumentParser()
    ap.add_argument("-D", type=int, default=5)
    ap.add_argument("--pat", default="Ph")
    ap.add_argument("--ld", default="nt")
    ap.add_argument("--stamps", action="store_true")
    ap.add_argument("--nvgpr", type=int, default=512)
    ap.add_argument("-o", default="/dev/stdout")
    a = ap.parse_args()
    open(a.o, "w").write(gen(a.D, a.pat, a.ld, a.stamps, a.nvgpr))
```

```python
import argparse, math, struct
NAME = "standalone__gqa_softmax__decode_kernel"
HEADER = """; Kernarg layout for this problem (48 bytes, ptrs only, base s[0:1]):
"""
def f32hex(x): return struct.unpack("<I", struct.pack("<f", x))[0]
def vr(a, n=1): return f"v{a}" if n == 1 else f"v[{a}:{a+n-1}]"
class E:
    def __init__(self): self.l = []
    def __call__(self, s): self.l.append("    " + s)
    def label(self, s): self.l.append(s + ":")
    def c(self, s): self.l.append("    ; " + s)
    def text(self): return "\n".join(self.l) + "\n"
DPP = "row_mask:0xf bank_mask:0xf"

def gen(D=5, pat="Ph", ld="nt", stamps=False, nvgpr=512, extra_wave=False, lds_force=0):
    NW = 4; N = 16
    assert 4 <= D <= 7
    ldf = (" " + ld) if ld else ""
    e = E()
    vO0, vO1, vO2 = 1, 2, 3
    vQ = 4
    vP = 8
    vX = 12; vY = 14; vS = 15
    vMx = 16; vMc = 17; vL = 18; vPD = 19
    vM = 20
    vA = 24
    vACC = 32
    vT = 36; vU = 37; vW = 38; vZ = 39
    vR = 40
    vF = 72
    slot = lambda k: vR + 4*k
    sQ, sKp, sVp, sO, sD, sWS = 4, 6, 8, 10, 12, 14
    sSK, sSV = 16, 20
    sW, sHead, sHeadB, sTmp, sC, sT = 24, 25, 26, 27, 28, 29
    LDS_M, LDS_L, LDS_ACC = 0, 16, 64
    lds_bytes = LDS_ACC + NW*512
    if pat == "Ph":   split_stride, tile_stride = 16384, 65536
    elif pat == "Pb": split_stride, tile_stride = 262144, 16384
    def stamp(i):
        if stamps:
            e(f"s_memrealtime s[{40+2*i}:{41+2*i}]")
            if i: e("s_waitcnt lgkmcnt(0)")
    def ld_(srd, voff, j, sl, soff):
        e(f"buffer_load_dwordx4 {vr(slot(sl),4)}, v{voff}, s[{srd}:{srd+3}], {soff} offen offset:{j*1024}{ldf}")
    def dots(j, sl):
        for c in range(4):
            src2 = "0" if c == 0 else f"v{vP+j}"
            e(f"v_dot2_f32_bf16 v{vP+j}, v{slot(sl)+c}, v{vQ+c}, {src2}")
    def reduce_scores():
        e("s_nop 2")
        e(f"v_add_f32_dpp v{vX}, v{vP}, v{vP} row_ror:8 row_mask:0xf bank_mask:0x3")
        e(f"v_add_f32_dpp v{vX+1}, v{vP+2}, v{vP+2} row_ror:8 row_mask:0xf bank_mask:0x3")
        e(f"v_add_f32_dpp v{vX}, v{vP+1}, v{vP+1} row_ror:8 row_mask:0xf bank_mask:0xc")
        e(f"v_add_f32_dpp v{vX+1}, v{vP+3}, v{vP+3} row_ror:8 row_mask:0xf bank_mask:0xc")
        e("s_nop 0")
        e(f"v_add_f32_dpp v{vY}, v{vX}, v{vX} row_half_mirror row_mask:0xf bank_mask:0x5")
        e(f"v_add_f32_dpp v{vY}, v{vX+1}, v{vX+1} row_half_mirror row_mask:0xf bank_mask:0xa")
        e("s_nop 1")
        e(f"v_add_f32_dpp v{vY}, v{vY}, v{vY} quad_perm:[1,0,3,2] {DPP}")
        e("s_nop 1")
        e(f"v_add_f32_dpp v{vS}, v{vY}, v{vY} quad_perm:[2,3,0,1] {DPP}")
    def wave_reduce(op, dst, src):
        e("s_nop 1")
        e(f"{op}_dpp v{dst}, v{src}, v{src} row_ror:4 {DPP}")
        e("s_nop 1")
        e(f"{op}_dpp v{dst}, v{dst}, v{dst} row_ror:8 {DPP}")
        e("s_nop 0")
        e(f"v_mov_b32 v{vU}, v{dst}")
        e("s_nop 1")
        e(f"v_permlane16_swap_b32 v{dst}, v{vU}")
        e(f"{op} v{dst}, v{dst}, v{vU}")
        e("s_nop 0")
        e(f"v_mov_b32 v{vU}, v{dst}")
        e("s_nop 1")
        e(f"v_permlane32_swap_b32 v{dst}, v{vU}")
        e(f"{op} v{dst}, v{dst}, v{vU}")
    bank_of_j = {0: 0, 2: 1, 1: 2, 3: 3}
    def a_operand(j, k):
        a = vA + 4*(k & 1)
        for r in range(4):
            e(f"v_and_b32_dpp v{a+r}, v{vPD}, v{vM+r} row_newbcast:{4*bank_of_j[j]} {DPP}")
        return a
    def mfma(a, sl):
        e(f"v_mfma_f32_16x16x32_bf16 {vr(vACC,4)}, {vr(a,4)}, {vr(slot(sl),4)}, {vr(vACC,4)}")
    def softmax_p():
        e(f"v_fma_f32 v{vW}, v{vS}, s{sC}, -v{vMc}")
        e(f"v_exp_f32 v{vW}, v{vW}")
        e("s_nop 0")
        e(f"v_add_f32 v{vL}, v{vL}, v{vW}")
        e(f"v_cvt_pk_bf16_f32 v{vPD}, v{vW}, v{vW}")
    def rescale_to(vnew):
        e(f"v_sub_f32 v{vZ}, v{vMx}, v{vnew}")
        e(f"v_mul_f32 v{vZ}, s{sC}, v{vZ}")
        e(f"v_exp_f32 v{vZ}, v{vZ}")
        e(f"v_mov_b32 v{vMx}, v{vnew}")
        e(f"v_mul_f32 v{vMc}, s{sC}, v{vnew}")
        e(f"v_mul_f32 v{vL}, v{vL}, v{vZ}")
        for r in range(4): e(f"v_mul_f32 v{vACC+r}, v{vACC+r}, v{vZ}")

    stamp(0)
    e("s_cmp_ge_u32 s2, 256")
    e("s_cbranch_scc1 L_end")
    e("s_load_dwordx4 s[4:7], s[0:1], 0")
    e("s_load_dwordx4 s[8:11], s[0:1], 16")
    e("s_load_dwordx4 s[12:15], s[0:1], 32")
    e(f"v_lshrrev_b32 v{vT}, 6, v0")
    e(f"v_and_b32 v{vU}, 63, v0")
    e(f"v_readfirstlane_b32 s{sW}, v{vT}")
    e(f"v_lshlrev_b32 v{vO0}, 4, v{vU}")
    e(f"v_lshlrev_b32 v{vT}, 12, v{vT}")
    e(f"s_lshr_b32 s{sHead}, s2, 2")
    e(f"s_and_b32 s{sTmp}, s2, 3")
    e(f"s_mul_i32 s{sTmp}, s{sTmp}, {split_stride}")
    e(f"v_add3_u32 v{vO0}, v{vO0}, v{vT}, s{sTmp}")
    e(f"s_lshl_b32 s{sHeadB}, s{sHead}, 8")
    e(f"v_and_b32 v{vU}, 15, v0")
    e(f"v_lshlrev_b32 v{vU}, 4, v{vU}")
    e(f"v_add_u32 v{vU}, s{sHeadB}, v{vU}")
    e(f"v_add_u32 v{vO1}, {tile_stride}, v{vO0}")
    e(f"v_add_u32 v{vO2}, {2*tile_stride}, v{vO0}")
    e(f"s_lshl_b32 s{sTmp}, s{sHead}, 20")
    e(f"s_mov_b32 s{sSK+2}, 0x100000")
    e(f"s_mov_b32 s{sSK+3}, 0x20000")
    e(f"s_mov_b32 s{sSV+2}, 0x100000")
    e(f"s_mov_b32 s{sSV+3}, 0x20000")
    e(f"s_mov_b32 s{sT}, 0")
    e("s_waitcnt lgkmcnt(0)")
    stamp(1)
    if extra_wave:
        e(f"s_cmp_eq_u32 s{sW}, 4")
        e("s_cbranch_scc1 L_end")
    e(f"s_add_u32 s{sSK}, s{sKp}, s{sTmp}")
    e(f"s_addc_u32 s{sSK+1}, s{sKp+1}, 0")
    e(f"s_add_u32 s{sSV}, s{sVp}, s{sTmp}")
    e(f"s_addc_u32 s{sSV+1}, s{sVp+1}, 0")
    e(f"global_load_dwordx4 {vr(vQ,4)}, v{vU}, s[{sQ}:{sQ+1}]")
    def issue_pro(idx):
        if idx < 4:   ld_(sSK, vO0, idx, 4+idx, "0")
        elif idx < 8: ld_(sSK, vO1, idx-4, idx-4, "0")
        else:         ld_(sSV, vO0, idx-8, 4+idx-8, "0")
    for idx in range(D): issue_pro(idx)
    e(f"s_mov_b32 s{sC}, 0x{f32hex(128**-0.5 * math.log2(math.e)):08x}")
    e(f"v_and_b32 v{vT}, 15, v0")
    e(f"v_and_b32 v{vX}, 1, v{vT}")
    e(f"v_mov_b32 v{vX+1}, 0xffff")
    e(f"v_lshlrev_b32 v{vX}, 4, v{vX}")
    e(f"v_lshlrev_b32 v{vX}, v{vX}, v{vX+1}")
    e(f"v_lshrrev_b32 v{vX+1}, 1, v{vT}")
    for r in range(4):
        e(f"v_cmp_eq_u32 vcc, {r}, v{vX+1}")
        e(f"v_mov_b32 v{vACC+r}, 0")
        e("s_nop 0")
        e(f"v_cndmask_b32 v{vM+r}, 0, v{vX}, vcc")
    for n in range(4):
        e(f"s_waitcnt vmcnt({D-1})")
        issue_pro(n + D)
        dots(n, 4+n)
    reduce_scores()
    wave_reduce("v_max_f32", vMx, vS)
    e(f"v_mul_f32 v{vMc}, s{sC}, v{vMx}")
    e(f"v_mov_b32 v{vL}, 0")
    softmax_p()
    stamp(2)
    def body(last):
        k = 0
        for p in range(8):
            q = p + D
            if p >= 4: a = a_operand(p-4, p)
            cnt = D-1 if not last else min(D-1, 11-p)
            e(f"s_waitcnt vmcnt({cnt})")
            issued = True
            if q < 8:    ld_(sSV, vO0, q-4, q, f"s{sT}")
            elif q < 12:
                if last: ld_(sSV, vO1, q-8, q-8, f"s{sT}")
                else:    ld_(sSK, vO2, q-8, q-8, f"s{sT}")
            elif not last: ld_(sSV, vO1, q-12, q-8, f"s{sT}")
            else: issued = False
            if p < 4:
                dots(p, p)
                if p == 3: reduce_scores()
            else:
                if not issued: e("s_nop 0")
                mfma(a, p)
    e.label("L_loop")
    body(False)
    e(f"v_cmp_gt_f32 vcc, v{vS}, v{vMx}")
    e(f"s_add_u32 s{sT}, s{sT}, {tile_stride}")
    e("s_cbranch_vccz L_nomax")
    wave_reduce("v_max_f32", vT, vS)
    e(f"v_max_f32 v{vT}, v{vT}, v{vMx}")
    rescale_to(vT)
    e.label("L_nomax")
    softmax_p()
    e(f"s_cmp_lt_u32 s{sT}, {(N-2)*tile_stride}")
    e("s_cbranch_scc1 L_loop")
    stamp(3)
    body(True)
    wave_reduce("v_max_f32", vT, vS)
    e(f"v_max_f32 v{vT}, v{vT}, v{vMx}")
    e(f"s_lshl_b32 s{sTmp}, s{sW}, 2")
    e(f"v_mov_b32 v{vU}, s{sTmp}")
    e(f"ds_write_b32 v{vU}, v{vT} offset:{LDS_M}")
    e(f"v_mov_b32 v{vW}, 0")
    e("s_waitcnt lgkmcnt(0)")
    e("s_barrier")
    e(f"ds_read_b128 {vr(vF,4)}, v{vW} offset:{LDS_M}")
    e("s_waitcnt lgkmcnt(0)")
    e(f"v_max3_f32 v{vT}, v{vF}, v{vF+1}, v{vF+2}")
    e(f"v_max_f32 v{vT}, v{vT}, v{vF+3}")
    rescale_to(vT)
    softmax_p()
    wave_reduce("v_add_f32", vT, vL)
    e(f"v_mov_b32 v{vU}, s{sTmp}")
    e(f"ds_write_b32 v{vU}, v{vT} offset:{LDS_L}")
    e(f"v_and_b32 v{vW}, 63, v0")
    e(f"v_lshlrev_b32 v{vW}, 4, v{vW}")
    e(f"s_lshl_b32 s{sTmp}, s{sW}, 9")
    e(f"v_add_u32 v{vZ}, s{sTmp}, v{vW}")
    for j in range(4):
        a = a_operand(j, j)
        e(f"s_waitcnt vmcnt({3-j})")
        e("s_nop 0")
        mfma(a, j)
    stamp(4)
    e("s_mov_b32 exec_hi, 0")
    e("s_nop 6")
    e(f"ds_write_b128 v{vZ}, {vr(vACC,4)} offset:{LDS_ACC}")
    e("s_waitcnt lgkmcnt(0)")
    e("s_barrier")
    e(f"s_cmp_lg_u32 s{sW}, 0")
    e("s_cbranch_scc1 L_end")
    stamp(5)
    R = vF
    for w in range(1, 4):
        e(f"ds_read_b128 {vr(R+4*w,4)}, v{vW} offset:{LDS_ACC + 512*w}")
    e(f"v_mov_b32 v{vU}, 0")
    e(f"ds_read_b128 {vr(R+16,4)}, v{vU} offset:{LDS_L}")
    e("s_waitcnt lgkmcnt(3)")
    e(f"v_pk_add_f32 {vr(vACC,2)}, {vr(vACC,2)}, {vr(R+4,2)}")
    e(f"v_pk_add_f32 {vr(vACC+2,2)}, {vr(vACC+2,2)}, {vr(R+6,2)}")
    e("s_waitcnt lgkmcnt(2)")
    e(f"v_pk_add_f32 {vr(vACC,2)}, {vr(vACC,2)}, {vr(R+8,2)}")
    e(f"v_pk_add_f32 {vr(vACC+2,2)}, {vr(vACC+2,2)}, {vr(R+10,2)}")
    e("s_waitcnt lgkmcnt(1)")
    e(f"v_pk_add_f32 {vr(vACC,2)}, {vr(vACC,2)}, {vr(R+12,2)}")
    e(f"v_pk_add_f32 {vr(vACC+2,2)}, {vr(vACC+2,2)}, {vr(R+14,2)}")
    e("s_waitcnt lgkmcnt(0)")
    e(f"v_add_f32 v{R+16}, v{R+16}, v{R+17}")
    e(f"v_add_f32 v{R+18}, v{R+18}, v{R+19}")
    e(f"v_add_f32 v{vL}, v{R+16}, v{R+18}")
    e(f"s_lshl_b32 s{sTmp}, s2, 10")
    e(f"v_add_u32 v{vU}, s{sTmp}, v{vW}")
    e(f"global_store_dwordx4 v{vU}, {vr(vACC,4)}, s[{sWS}:{sWS+1}] sc1")
    e(f"v_mov_b32 v{R}, v{vMc}")
    e(f"v_mov_b32 v{R+1}, v{vL}")
    e(f"v_mov_b32 v{vU}, s{sTmp}")
    e(f"s_lshl_b32 s{sTmp}, s{sHead}, 2")
    e(f"v_mov_b32 v{R+2}, s{sTmp}")
    e(f"v_mov_b32 v{R+3}, 1")
    e("s_mov_b32 exec_lo, 1")
    e(f"global_store_dwordx2 v{vU}, {vr(R,2)}, s[{sWS}:{sWS+1}] offset:512 sc1")
    e("s_waitcnt vmcnt(0)")
    e(f"global_atomic_add v{R+4}, v{R+2}, v{R+3}, s[{sD}:{sD+1}] sc0")
    e("s_waitcnt vmcnt(0)")
    e(f"v_readfirstlane_b32 s{sTmp}, v{R+4}")
    e("s_mov_b32 exec_lo, -1")
    if stamps:
        stamp(6)
        e(f"s_lshl_b32 s30, s2, 6")
        e(f"s_add_u32 s30, s30, 0x4000000")
        e(f"v_mov_b32 v{vT}, s30")
        for i in range(7): e(f"v_mov_b32 v{R+8+i}, s{40+2*i}")
        e(f"v_mov_b32 v{R+8+7}, s{sTmp}")
        e(f"global_store_dwordx4 v{vT}, {vr(R+8,4)}, s[{sWS}:{sWS+1}]")
        e(f"global_store_dwordx4 v{vT}, {vr(R+12,4)}, s[{sWS}:{sWS+1}] offset:16")
        e("s_nop 1")
    e(f"s_cmp_lg_u32 s{sTmp}, 3")
    e("s_cbranch_scc1 L_end")
    e(f"s_lshl_b32 s{sTmp}, s{sHead}, 12")
    e(f"v_add_u32 v{vU}, s{sTmp}, v{vW}")
    e(f"v_mov_b32 v{vT}, s{sTmp}")
    B = R + 16
    for s in range(4):
        e(f"global_load_dwordx2 {vr(B+16+2*s,2)}, v{vT}, s[{sWS}:{sWS+1}] offset:{s*1024+512} sc1")
    for s in range(4):
        e(f"global_load_dwordx4 {vr(B+4*s,4)}, v{vU}, s[{sWS}:{sWS+1}] offset:{s*1024} sc1")
    Mx, F, L, O = R, R+4, R+8, R+12
    e("s_waitcnt vmcnt(4)")
    e(f"v_max3_f32 v{Mx}, v{B+16}, v{B+18}, v{B+20}")
    e(f"v_max_f32 v{Mx}, v{Mx}, v{B+22}")
    for s in range(4): e(f"v_sub_f32 v{F+s}, v{B+16+2*s}, v{Mx}")
    for s in range(4): e(f"v_exp_f32 v{F+s}, v{F+s}")
    e("s_nop 0")
    e(f"v_mul_f32 v{L}, v{F}, v{B+17}")
    for s in range(1, 4): e(f"v_fmac_f32 v{L}, v{F+s}, v{B+17+2*s}")
    e(f"v_rcp_f32 v{L}, v{L}")
    e("s_nop 0")
    for s in range(4): e(f"v_mul_f32 v{F+s}, v{F+s}, v{L}")
    e("s_waitcnt vmcnt(0)")
    for r in range(4): e(f"v_mul_f32 v{O+r}, v{F}, v{B+r}")
    for s in range(1, 4):
        for r in range(4): e(f"v_fmac_f32 v{O+r}, v{F+s}, v{B+4*s+r}")
    e(f"v_cvt_pk_bf16_f32 v{R}, v{O}, v{O+1}")
    e(f"v_cvt_pk_bf16_f32 v{R+1}, v{O+2}, v{O+3}")
    e(f"v_and_b32 v{vT}, 15, v0")
    e(f"v_lshlrev_b32 v{vT}, 4, v{vT}")
    e(f"v_lshrrev_b32 v{vU}, 4, v0")
    e(f"v_lshlrev_b32 v{vU}, 3, v{vU}")
    e(f"v_add3_u32 v{vT}, v{vT}, v{vU}, s{sHeadB}")
    e(f"global_store_dwordx2 v{vT}, {vr(R,2)}, s[{sO}:{sO+1}]")
    if stamps:
        e("s_waitcnt vmcnt(0)")
        stamp(7)
        e(f"v_mov_b32 v{vT}, s30")
        e(f"v_mov_b32 v{vU}, s54")
        e(f"global_store_dword v{vT}, v{vU}, s[{sWS}:{sWS+1}] offset:32")
    e.label("L_end")
    e("s_endpgm")
    acc_off = min(256, nvgpr)
    out = HEADER + f"; @launch grid=(256,1,1) block=({NW*64 + (64 if extra_wave else 0)},1,1) lds={max(lds_bytes, lds_force)}\n"
    out += f""".amdgcn_target "amdgcn-amd-amdhsa--gfx950"
.text
.globl {NAME}
.p2align 8
.type {NAME},@function
{NAME}:
""" + e.text() + f""".section .rodata,"a"
.p2align 6
.amdhsa_kernel {NAME}
  .amdhsa_next_free_vgpr {nvgpr}
  .amdhsa_next_free_sgpr 64
  .amdhsa_accum_offset {acc_off}
  .amdhsa_group_segment_fixed_size 0
  .amdhsa_kernarg_size 48
  .amdhsa_user_sgpr_count 2
  .amdhsa_user_sgpr_kernarg_segment_ptr 1
  .amdhsa_system_sgpr_workgroup_id_x 1
  .amdhsa_float_denorm_mode_32 3
.end_amdhsa_kernel
"""
    return out

if __name__ == "__main__":
    ap = argparse.ArgumentParser()
    ap.add_argument("-D", type=int, default=5)
    ap.add_argument("--pat", default="Ph")
    ap.add_argument("--ld", default="nt")
    ap.add_argument("--stamps", action="store_true")
    ap.add_argument("--nvgpr", type=int, default=512)
    ap.add_argument("--xw", action="store_true")
    ap.add_argument("--lds", type=int, default=0)
    ap.add_argument("-o", default="/dev/stdout")
    a = ap.parse_args()
    open(a.o, "w").write(gen(a.D, a.pat, a.ld, a.stamps, a.nvgpr, a.xw, a.lds))
```

```python
import argparse, math, struct
NAME = "standalone__gqa_softmax__decode_kernel"
HEADER = """; Kernarg layout for this problem (48 bytes, ptrs only, base s[0:1]):
;   offset  24: d_out     shape=(2, 32, 1, 128) dtype=bfloat16 (2 bytes/elem)
;   offset  32: d_debug   256 bytes
;   offset  40: d_ws      268435456 bytes workspace
"""
def f32hex(x): return struct.unpack("<I", struct.pack("<f", x))[0]
def vr(a, n=1): return f"v{a}" if n == 1 else f"v[{a}:{a+n-1}]"
class E:
    def __init__(self): self.l = []
    def __call__(self, s): self.l.append("    " + s)
    def label(self, s): self.l.append(s + ":")
    def c(self, s): self.l.append("    ; " + s)
    def text(self): return "\n".join(self.l) + "\n"
DPP = "row_mask:0xf bank_mask:0xf"

def gen(D=5, pat="Ph", ld="nt", stamps=False, nvgpr=256, a0=True, outst="", polls=12, flag="atomic", late=True, noS=False):
    NW = 4; N = 16
    assert 4 <= D <= 7
    ldf = (" " + ld) if ld else ""
    e = E()
    vO0, vO1, vO2 = 1, 2, 3
    vQ = 4
    vP = 8
    vX = 12; vY = 14; vS = 15
    vMx = 16; vMc = 17; vL = 18; vPD = 19
    vM = 20
    vA = 24
    vACC = 32
    vT = 36; vU = 37; vW = 38; vZ = 39
    vR = 40
    vF = 72
    slot = lambda k: vR + 4*k
    sQ, sKp, sVp, sO, sD, sWS = 4, 6, 8, 10, 12, 14
    sSK, sSV = 16, 20
    sW, sHead, sHeadB, sTmp, sC, sT = 24, 25, 26, 27, 28, 29
    LDS_M, LDS_L, LDS_ACC = 0, 16, 64
    lds_bytes = LDS_ACC + NW*512
    if pat == "Ph":   split_stride, tile_stride = 16384, 65536
    elif pat == "Pb": split_stride, tile_stride = 262144, 16384
    def stamp(i):
        if stamps:
            e(f"s_memrealtime s[{40+2*i}:{41+2*i}]")
            if i: e("s_waitcnt lgkmcnt(0)")
    def ld_(srd, voff, j, sl, soff):
        e(f"buffer_load_dwordx4 {vr(slot(sl),4)}, v{voff}, s[{srd}:{srd+3}], {soff} offen offset:{j*1024}{ldf}")
    def dots(j, sl):
        for c in range(4):
            src2 = "0" if c == 0 else f"v{vP+j}"
            e(f"v_dot2_f32_bf16 v{vP+j}, v{slot(sl)+c}, v{vQ+c}, {src2}")
    def reduce_scores():
        e("s_nop 2")
        e(f"v_add_f32_dpp v{vX}, v{vP}, v{vP} row_ror:8 row_mask:0xf bank_mask:0x3")
        e(f"v_add_f32_dpp v{vX+1}, v{vP+2}, v{vP+2} row_ror:8 row_mask:0xf bank_mask:0x3")
        e(f"v_add_f32_dpp v{vX}, v{vP+1}, v{vP+1} row_ror:8 row_mask:0xf bank_mask:0xc")
        e(f"v_add_f32_dpp v{vX+1}, v{vP+3}, v{vP+3} row_ror:8 row_mask:0xf bank_mask:0xc")
        e("s_nop 0")
        e(f"v_add_f32_dpp v{vY}, v{vX}, v{vX} row_half_mirror row_mask:0xf bank_mask:0x5")
        e(f"v_add_f32_dpp v{vY}, v{vX+1}, v{vX+1} row_half_mirror row_mask:0xf bank_mask:0xa")
        e("s_nop 1")
        e(f"v_add_f32_dpp v{vY}, v{vY}, v{vY} quad_perm:[1,0,3,2] {DPP}")
        e("s_nop 1")
        e(f"v_add_f32_dpp v{vS}, v{vY}, v{vY} quad_perm:[2,3,0,1] {DPP}")
    def wave_reduce(op, dst, src):
        e("s_nop 1")
        e(f"{op}_dpp v{dst}, v{src}, v{src} row_ror:4 {DPP}")
        e("s_nop 1")
        e(f"{op}_dpp v{dst}, v{dst}, v{dst} row_ror:8 {DPP}")
        e("s_nop 0")
        e(f"v_mov_b32 v{vU}, v{dst}")
        e("s_nop 1")
        e(f"v_permlane16_swap_b32 v{dst}, v{vU}")
        e(f"{op} v{dst}, v{dst}, v{vU}")
        e("s_nop 0")
        e(f"v_mov_b32 v{vU}, v{dst}")
        e("s_nop 1")
        e(f"v_permlane32_swap_b32 v{dst}, v{vU}")
        e(f"{op} v{dst}, v{dst}, v{vU}")
    bank_of_j = {0: 0, 2: 1, 1: 2, 3: 3}
    def a_operand(j, k):
        a = vA + 4*(k & 1)
        for r in range(4):
            e(f"v_and_b32_dpp v{a+r}, v{vPD}, v{vM+r} row_newbcast:{4*bank_of_j[j]} {DPP}")
        return a
    def mfma(a, sl):
        e(f"v_mfma_f32_16x16x32_bf16 {vr(vACC,4)}, {vr(a,4)}, {vr(slot(sl),4)}, {vr(vACC,4)}")
    def softmax_p():
        e(f"v_fma_f32 v{vW}, v{vS}, s{sC}, -v{vMc}")
        e(f"v_exp_f32 v{vW}, v{vW}")
        e("s_nop 0")
        e(f"v_add_f32 v{vL}, v{vL}, v{vW}")
        e(f"v_cvt_pk_bf16_f32 v{vPD}, v{vW}, v{vW}")
    def rescale_to(vnew):
        e(f"v_sub_f32 v{vZ}, v{vMx}, v{vnew}")
        e(f"v_mul_f32 v{vZ}, s{sC}, v{vZ}")
        e(f"v_exp_f32 v{vZ}, v{vZ}")
        e(f"v_mov_b32 v{vMx}, v{vnew}")
        e(f"v_mul_f32 v{vMc}, s{sC}, v{vnew}")
        e(f"v_mul_f32 v{vL}, v{vL}, v{vZ}")
        for r in range(4): e(f"v_mul_f32 v{vACC+r}, v{vACC+r}, v{vZ}")

    stamp(0)
    e("s_cmp_ge_u32 s2, 256")
    e("s_cbranch_scc1 L_end")
    e("s_load_dwordx4 s[4:7], s[0:1], 0")
    e("s_load_dwordx4 s[8:11], s[0:1], 16")
    e("s_load_dwordx4 s[12:15], s[0:1], 32")
    e(f"v_lshrrev_b32 v{vT}, 6, v0")
    e(f"v_and_b32 v{vU}, 63, v0")
    e(f"v_readfirstlane_b32 s{sW}, v{vT}")
    e(f"v_lshlrev_b32 v{vO0}, 4, v{vU}")
    e(f"v_lshlrev_b32 v{vT}, 12, v{vT}")
    e(f"s_lshr_b32 s{sHead}, s2, 2")
    e(f"s_and_b32 s{sTmp}, s2, 3")
    e(f"s_mul_i32 s{sTmp}, s{sTmp}, {split_stride}")
    e(f"v_add3_u32 v{vO0}, v{vO0}, v{vT}, s{sTmp}")
    e(f"s_lshl_b32 s{sHeadB}, s{sHead}, 8")
    e(f"v_and_b32 v{vU}, 15, v0")
    e(f"v_lshlrev_b32 v{vU}, 4, v{vU}")
    e(f"v_add_u32 v{vU}, s{sHeadB}, v{vU}")
    e(f"v_add_u32 v{vO1}, {tile_stride}, v{vO0}")
    e(f"v_add_u32 v{vO2}, {2*tile_stride}, v{vO0}")
    e(f"s_lshl_b32 s{sTmp}, s{sHead}, 20")
    e(f"s_mov_b32 s{sSK+2}, 0x100000")
    e(f"s_mov_b32 s{sSK+3}, 0x20000")
    e(f"s_mov_b32 s{sSV+2}, 0x100000")
    e(f"s_mov_b32 s{sSV+3}, 0x20000")
    e(f"s_mov_b32 s{sT}, 0")
    e("s_waitcnt lgkmcnt(0)")
    stamp(1)
    e(f"s_cmp_eq_u32 s{sW}, 4")
    e("s_cbranch_scc1 L_helper")
    e(f"s_add_u32 s{sSK}, s{sKp}, s{sTmp}")
    e(f"s_addc_u32 s{sSK+1}, s{sKp+1}, 0")
    e(f"s_add_u32 s{sSV}, s{sVp}, s{sTmp}")
    e(f"s_addc_u32 s{sSV+1}, s{sVp+1}, 0")
    e(f"global_load_dwordx4 {vr(vQ,4)}, v{vU}, s[{sQ}:{sQ+1}]")
    def issue_pro(idx):
        if idx < 4:   ld_(sSK, vO0, idx, 4+idx, "0")
        elif idx < 8: ld_(sSK, vO1, idx-4, idx-4, "0")
        else:         ld_(sSV, vO0, idx-8, 4+idx-8, "0")
    for idx in range(D): issue_pro(idx)
    e(f"s_mov_b32 s{sC}, 0x{f32hex(128**-0.5 * math.log2(math.e)):08x}")
    e(f"v_and_b32 v{vT}, 15, v0")
    e(f"v_and_b32 v{vX}, 1, v{vT}")
    e(f"v_mov_b32 v{vX+1}, 0xffff")
    e(f"v_lshlrev_b32 v{vX}, 4, v{vX}")
    e(f"v_lshlrev_b32 v{vX}, v{vX}, v{vX+1}")
    e(f"v_lshrrev_b32 v{vX+1}, 1, v{vT}")
    for r in range(4):
        e(f"v_cmp_eq_u32 vcc, {r}, v{vX+1}")
        e(f"v_mov_b32 v{vACC+r}, 0")
        e("s_nop 0")
        e(f"v_cndmask_b32 v{vM+r}, 0, v{vX}, vcc")
    for n in range(4):
        e(f"s_waitcnt vmcnt({D-1})")
        issue_pro(n + D)
        dots(n, 4+n)
    reduce_scores()
    wave_reduce("v_max_f32", vMx, vS)
    e(f"v_mul_f32 v{vMc}, s{sC}, v{vMx}")
    e(f"v_mov_b32 v{vL}, 0")
    softmax_p()
    stamp(2)
    def body(last):
        k = 0
        for p in range(8):
            q = p + D
            if p >= 4: a = a_operand(p-4, p)
            cnt = D-1 if not last else min(D-1, 11-p)
            e(f"s_waitcnt vmcnt({cnt})")
            issued = True
            if q < 8:    ld_(sSV, vO0, q-4, q, f"s{sT}")
            elif q < 12:
                if last: ld_(sSV, vO1, q-8, q-8, f"s{sT}")
                else:    ld_(sSK, vO2, q-8, q-8, f"s{sT}")
            elif not last: ld_(sSV, vO1, q-12, q-8, f"s{sT}")
            else: issued = False
            if p < 4:
                dots(p, p)
                if p == 3: reduce_scores()
            else:
                if not issued: e("s_nop 0")
                mfma(a, p)
    e.label("L_loop")
    body(False)
    e(f"v_cmp_gt_f32 vcc, v{vS}, v{vMx}")
    e(f"s_add_u32 s{sT}, s{sT}, {tile_stride}")
    e("s_cbranch_vccz L_nomax")
    wave_reduce("v_max_f32", vT, vS)
    e(f"v_max_f32 v{vT}, v{vT}, v{vMx}")
    rescale_to(vT)
    e.label("L_nomax")
    softmax_p()
    e(f"s_cmp_lt_u32 s{sT}, {(N-2)*tile_stride}")
    e("s_cbranch_scc1 L_loop")
    stamp(3)
    if late: e("s_barrier")
    body(True)
    wave_reduce("v_max_f32", vT, vS)
    e(f"v_max_f32 v{vT}, v{vT}, v{vMx}")
    e(f"s_lshl_b32 s{sTmp}, s{sW}, 2")
    e(f"v_mov_b32 v{vU}, s{sTmp}")
    e(f"ds_write_b32 v{vU}, v{vT} offset:{LDS_M}")
    e(f"v_mov_b32 v{vW}, 0")
    e("s_waitcnt lgkmcnt(0)")
    e("s_barrier")
    e(f"ds_read_b128 {vr(vF,4)}, v{vW} offset:{LDS_M}")
    e("s_waitcnt lgkmcnt(0)")
    e(f"v_max3_f32 v{vT}, v{vF}, v{vF+1}, v{vF+2}")
    e(f"v_max_f32 v{vT}, v{vT}, v{vF+3}")
    rescale_to(vT)
    softmax_p()
    wave_reduce("v_add_f32", vT, vL)
    e(f"v_mov_b32 v{vU}, s{sTmp}")
    e(f"ds_write_b32 v{vU}, v{vT} offset:{LDS_L}")
    e(f"v_and_b32 v{vW}, 63, v0")
    e(f"v_lshlrev_b32 v{vW}, 4, v{vW}")
    e(f"s_lshl_b32 s{sTmp}, s{sW}, 9")
    e(f"v_add_u32 v{vZ}, s{sTmp}, v{vW}")
    for j in range(4):
        a = a_operand(j, j)
        e(f"s_waitcnt vmcnt({3-j})")
        e("s_nop 0")
        mfma(a, j)
    stamp(4)
    e("s_mov_b32 exec_hi, 0")
    e("s_nop 6")
    e(f"ds_write_b128 v{vZ}, {vr(vACC,4)} offset:{LDS_ACC}")
    e("s_waitcnt lgkmcnt(0)")
    e("s_barrier")
    e("s_endpgm")
    e.label("L_helper")
    hL16, hA, hB, hF = 8, 9, 10, 11
    G = 12
    def Gk(k): return G + 8*(k-1)
    OWN = 36
    T1, U, FO = 44, 48, 52
    R = 56
    sOK, sCnt, sP = 30, 31, 32
    e(f"v_and_b32 v{hL16}, 63, v0")
    e(f"v_lshlrev_b32 v{hL16}, 4, v{hL16}")
    e(f"s_lshl_b32 s{sTmp}, s2, 10")
    e(f"v_add_u32 v{hA}, s{sTmp}, v{hL16}")
    for r in range(4): e(f"v_mov_b32 v{R+r}, -1")
    if not noS: e(f"global_store_dwordx4 v{hA}, {vr(R,4)}, s[{sWS}:{sWS+1}] sc1")
    e(f"s_lshl_b32 s{sTmp}, s{sHead}, 2")
    e(f"v_mov_b32 v{hB}, s{sTmp}")
    e(f"v_mov_b32 v{hF}, 1")
    e(f"v_mov_b32 v{hA}, s2")
    e(f"s_mov_b32 s{sC}, 0x{f32hex(128**-0.5 * math.log2(math.e)):08x}")
    for k in (1, 2, 3):
        e(f"s_xor_b32 s{sP+k-1}, s2, {k}")
        e(f"s_lshl_b32 s{sP+k-1}, s{sP+k-1}, 10")
    e("s_mov_b32 exec_hi, 0")
    e("s_mov_b32 exec_lo, 1")
    e("s_waitcnt vmcnt(0)")
    stamp(2)
    if flag == "atomic":
        e(f"global_atomic_add v{hB}, v{hF}, s[{sD}:{sD+1}]")
        FULL = 4
    elif flag == "byte":
        e(f"global_store_byte v{hA}, v{hF}, s[{sD}:{sD+1}] sc1")
        FULL = 0x01010101
    else:
        FULL = 0
    e(f"s_mov_b32 s{sOK}, 0")
    if late:
        e("s_barrier")
        e(f"global_load_dword v{hF}, v{hB}, s[{sD}:{sD+1}] sc1")
        e("s_waitcnt vmcnt(0)")
        e(f"v_readfirstlane_b32 s{sTmp}, v{hF}")
        e(f"s_cmp_lg_u32 s{sTmp}, {FULL}")
        e("s_cbranch_scc1 L_flags_done")
        e(f"s_mov_b32 s{sOK}, 1")
    else:
        e(f"s_mov_b32 s{sCnt}, {polls}")
        e.label("L_poll")
        e(f"global_load_dword v{hF}, v{hB}, s[{sD}:{sD+1}] sc1")
        e("s_waitcnt vmcnt(0)")
        e(f"v_readfirstlane_b32 s{sTmp}, v{hF}")
        e(f"s_sub_u32 s{sCnt}, s{sCnt}, 1")
        e(f"s_cmp_eq_u32 s{sTmp}, {FULL}")
        e("s_cbranch_scc1 L_flags_ok")
        e(f"s_cmp_lg_u32 s{sCnt}, 0")
        e("s_cbranch_scc1 L_poll")
        e("s_branch L_flags_done")
        e.label("L_flags_ok")
        e(f"s_mov_b32 s{sOK}, 1")
    e.label("L_flags_done")
    stamp(3)
    if stamps: e(f"s_mov_b32 s35, s{sOK}")
    e("s_mov_b32 exec_lo, -1")
    for k in (1, 2, 3):
        e(f"v_add_u32 v{2+k}, s{sP+k-1}, v{hL16}")
        e(f"v_mov_b32 v{R+k}, s{sP+k-1}")
    vAcc = lambda k: 2 + k
    vMl = lambda k: R + k
    e(f"v_mov_b32 v{hA}, 0")
    def attempt_loads():
        for k in (1, 2, 3):
            e(f"global_load_dwordx4 {vr(Gk(k),4)}, v{vAcc(k)}, s[{sWS}:{sWS+1}] sc1")
            e(f"global_load_dwordx2 {vr(Gk(k)+4,2)}, v{vMl(k)}, s[{sWS}:{sWS+1}] offset:512 sc1")
    def check(fail_label):
        e("s_waitcnt vmcnt(0)")
        X = R + 4
        e(f"v_max3_u32 v{X}, v{Gk(1)}, v{Gk(1)+1}, v{Gk(1)+2}")
        e(f"v_max3_u32 v{X+1}, v{Gk(2)}, v{Gk(2)+1}, v{Gk(2)+2}")
        e(f"v_max3_u32 v{X+2}, v{Gk(3)}, v{Gk(3)+1}, v{Gk(3)+2}")
        for k in (1, 2, 3):
            e(f"v_max3_u32 v{X+k-1}, v{X+k-1}, v{Gk(k)+3}, v{Gk(k)+4}")
        e(f"v_max3_u32 v{X}, v{X}, v{Gk(1)+5}, v{Gk(2)+5}")
        e(f"v_max3_u32 v{X+1}, v{X+1}, v{X+2}, v{Gk(3)+5}")
        e(f"v_max_u32 v{X}, v{X}, v{X+1}")
        e(f"v_cmp_eq_u32 vcc, -1, v{X}")
        e(f"s_cbranch_vccnz {fail_label}")
    def precompute():
        X = R + 4
        e(f"v_max3_f32 v{X}, v{OWN+4}, v{Gk(1)+4}, v{Gk(2)+4}")
        e(f"v_max_f32 v{X}, v{X}, v{Gk(3)+4}")
        e(f"v_sub_f32 v{FO}, v{OWN+4}, v{X}")
        for k in (1, 2, 3): e(f"v_sub_f32 v{X+k}, v{Gk(k)+4}, v{X}")
        e(f"v_exp_f32 v{FO}, v{FO}")
        for k in (1, 2, 3): e(f"v_exp_f32 v{X+k}, v{X+k}")
        e("s_nop 0")
        for r in range(4): e(f"v_mul_f32 v{T1+r}, v{X+1}, v{Gk(1)+r}")
        for r in range(4): e(f"v_mul_f32 v{U+r}, v{X+2}, v{Gk(2)+r}")
        for r in range(4): e(f"v_mul_f32 v{Gk(3)+r}, v{X+3}, v{Gk(3)+r}")
        e(f"v_mul_f32 v{FO+1}, v{X+1}, v{Gk(1)+5}")
        e(f"v_mul_f32 v{FO+2}, v{X+2}, v{Gk(2)+5}")
        e(f"v_mul_f32 v{X+3}, v{X+3}, v{Gk(3)+5}")
        for r in range(4): e(f"v_add_f32 v{U+r}, v{U+r}, v{Gk(3)+r}")
        e(f"v_add_f32 v{FO+2}, v{FO+2}, v{X+3}")
    e("s_barrier")
    stamp(4)
    if a0:
        e(f"s_cmp_eq_u32 s{sOK}, 0")
        e("s_cbranch_scc1 L_no_a0_loads")
        attempt_loads()
        e.label("L_no_a0_loads")
    e(f"ds_read_b128 {vr(R+8,4)}, v{hA} offset:{LDS_M}")
    e("s_waitcnt lgkmcnt(0)")
    e(f"v_max3_f32 v{R+8}, v{R+8}, v{R+9}, v{R+10}")
    e(f"v_max_f32 v{R+8}, v{R+8}, v{R+11}")
    e(f"v_mul_f32 v{OWN+4}, s{sC}, v{R+8}")
    e(f"s_mov_b32 s{sCnt}, 0")
    if a0:
        e(f"s_cmp_eq_u32 s{sOK}, 0")
        e("s_cbranch_scc1 L_a0_done")
        check("L_a0_done")
        precompute()
        e(f"s_mov_b32 s{sCnt}, 1")
        e.label("L_a0_done")
    e("s_barrier")
    stamp(5)
    for w in range(4):
        e(f"ds_read_b128 {vr(R+8+4*w,4)}, v{hL16} offset:{LDS_ACC + 512*w}")
    e(f"ds_read_b128 {vr(R+24,4)}, v{hA} offset:{LDS_L}")
    e("s_waitcnt lgkmcnt(3)")
    e(f"v_pk_add_f32 {vr(R+8,2)}, {vr(R+8,2)}, {vr(R+12,2)}")
    e(f"v_pk_add_f32 {vr(R+10,2)}, {vr(R+10,2)}, {vr(R+14,2)}")
    e("s_waitcnt lgkmcnt(1)")
    e(f"v_pk_add_f32 {vr(R+16,2)}, {vr(R+16,2)}, {vr(R+20,2)}")
    e(f"v_pk_add_f32 {vr(R+18,2)}, {vr(R+18,2)}, {vr(R+22,2)}")
    e("s_waitcnt lgkmcnt(0)")
    e(f"v_add_f32 v{R+24}, v{R+24}, v{R+25}")
    e(f"v_add_f32 v{R+26}, v{R+26}, v{R+27}")
    e(f"v_pk_add_f32 {vr(OWN,2)}, {vr(R+8,2)}, {vr(R+16,2)}")
    e(f"v_pk_add_f32 {vr(OWN+2,2)}, {vr(R+10,2)}, {vr(R+18,2)}")
    e(f"v_add_f32 v{OWN+5}, v{R+24}, v{R+26}")
    e(f"s_cmp_eq_u32 s{sCnt}, 1")
    e("s_cbranch_scc1 L_final")
    for r in range(6): e(f"v_min_u32 v{OWN+r}, 0xfffffffe, v{OWN+r}")
    e(f"s_lshl_b32 s{sTmp}, s2, 10")
    e(f"v_add_u32 v{hB}, s{sTmp}, v{hL16}")
    e(f"v_mov_b32 v{hF}, s{sTmp}")
    e(f"global_store_dwordx4 v{hB}, {vr(OWN,4)}, s[{sWS}:{sWS+1}] sc1")
    e(f"global_store_dwordx2 v{hF}, {vr(OWN+4,2)}, s[{sWS}:{sWS+1}] offset:512 sc1")
    e(f"s_mov_b32 s{sCnt}, 2")
    e(f"s_cmp_eq_u32 s{sOK}, 1")
    e("s_cbranch_scc1 L_try")
    e(f"s_lshl_b32 s{sTmp}, s{sHead}, 2")
    e(f"v_mov_b32 v{hB}, s{sTmp}")
    e("s_waitcnt vmcnt(0)")
    e(f"global_load_dword v{hF}, v{hB}, s[{sD}:{sD+1}] sc1")
    e("s_waitcnt vmcnt(0)")
    e(f"v_readfirstlane_b32 s{sTmp}, v{hF}")
    e(f"s_mov_b32 s{sCnt}, 1")
    e(f"s_cmp_lg_u32 s{sTmp}, {FULL}")
    e("s_cbranch_scc1 L_exit")
    e.label("L_try")
    attempt_loads()
    check("L_try_fail")
    precompute()
    e.label("L_final")
    e(f"v_mul_f32 v{R+9}, v{FO}, v{OWN+5}")
    for r in range(4): e(f"v_mul_f32 v{OWN+r}, v{FO}, v{OWN+r}")
    e(f"v_add_f32 v{R+9}, v{R+9}, v{FO+1}")
    for r in range(4): e(f"v_add_f32 v{OWN+r}, v{OWN+r}, v{T1+r}")
    e(f"v_add_f32 v{R+9}, v{R+9}, v{FO+2}")
    for r in range(4): e(f"v_add_f32 v{OWN+r}, v{OWN+r}, v{U+r}")
    e(f"v_rcp_f32 v{R+9}, v{R+9}")
    e(f"v_lshrrev_b32 v{hB}, 8, v{hL16}")
    e(f"v_and_b32 v{hF}, 0xf0, v{hL16}")
    e(f"v_lshlrev_b32 v{hB}, 3, v{hB}")
    e(f"v_add3_u32 v{hB}, v{hB}, v{hF}, s{sHeadB}")
    for r in range(4): e(f"v_mul_f32 v{OWN+r}, v{OWN+r}, v{R+9}")
    e(f"v_cvt_pk_bf16_f32 v{R}, v{OWN}, v{OWN+1}")
    e(f"v_cvt_pk_bf16_f32 v{R+1}, v{OWN+2}, v{OWN+3}")
    e(f"global_store_dwordx2 v{hB}, {vr(R,2)}, s[{sO}:{sO+1}]{(' ' + outst) if outst else ''}")
    if stamps:
        e("s_waitcnt vmcnt(0)")
        e(f"s_mov_b32 s{sCnt}, 3")
        e("s_branch L_exit_stamp")
        e.label("L_try_fail2")
    e("s_branch L_exit")
    e.label("L_try_fail")
    e(f"s_sub_u32 s{sCnt}, s{sCnt}, 1")
    e(f"s_cmp_lg_u32 s{sCnt}, 0")
    e("s_cbranch_scc1 L_try")
    e.label("L_exit")
    if stamps:
        e(f"s_mov_b32 s{sCnt}, 0")
        e.label("L_exit_stamp")
        stamp(6)
        e(f"s_lshl_b32 s33, s2, 6")
        e(f"s_add_u32 s33, s33, 0x4000000")
        e(f"v_mov_b32 v{hB}, s33")
        for i in (0, 1, 5, 6): pass
        e(f"v_mov_b32 v{R}, s40"); e(f"v_mov_b32 v{R+1}, s42"); e(f"v_mov_b32 v{R+2}, s44"); e(f"v_mov_b32 v{R+3}, s46")
        e(f"v_mov_b32 v{R+4}, s48"); e(f"v_mov_b32 v{R+5}, s50"); e(f"v_mov_b32 v{R+6}, s52"); e(f"v_mov_b32 v{R+7}, s{sCnt}")
        e(f"v_mov_b32 v{R+8}, s52"); e(f"v_mov_b32 v{R+9}, s35")
        e("s_getreg_b32 s36, hwreg(HW_REG_HW_ID)"); e("s_getreg_b32 s37, hwreg(HW_REG_XCC_ID)")
        e(f"v_mov_b32 v{R+10}, s36"); e(f"v_mov_b32 v{R+11}, s37")
        e(f"global_store_dwordx4 v{hB}, {vr(R,4)}, s[{sWS}:{sWS+1}]")
        e(f"global_store_dwordx4 v{hB}, {vr(R+4,4)}, s[{sWS}:{sWS+1}] offset:16")
        e(f"global_store_dwordx4 v{hB}, {vr(R+8,4)}, s[{sWS}:{sWS+1}] offset:32")
    e.label("L_end")
    e("s_endpgm")
    acc_off = min(256, nvgpr)
    out = HEADER + f"; @launch grid=(256,1,1) block=({NW*64+64},1,1) lds={lds_bytes}\n"
    out += f""".amdgcn_target "amdgcn-amd-amdhsa--gfx950"
.text
.globl {NAME}
.p2align 8
.type {NAME},@function
{NAME}:
""" + e.text() + f""".section .rodata,"a"
.p2align 6
.amdhsa_kernel {NAME}
  .amdhsa_next_free_vgpr {nvgpr}
  .amdhsa_next_free_sgpr 64
  .amdhsa_accum_offset {acc_off}
  .amdhsa_group_segment_fixed_size 0
  .amdhsa_kernarg_size 48
  .amdhsa_user_sgpr_count 2
  .amdhsa_user_sgpr_kernarg_segment_ptr 1
  .amdhsa_system_sgpr_workgroup_id_x 1
  .amdhsa_float_denorm_mode_32 3
.end_amdhsa_kernel
"""
    return out

if __name__ == "__main__":
    ap = argparse.ArgumentParser()
    ap.add_argument("-D", type=int, default=5)
    ap.add_argument("--pat", default="Ph")
    ap.add_argument("--ld", default="nt")
    ap.add_argument("--stamps", action="store_true")
    ap.add_argument("--nvgpr", type=int, default=256)
    ap.add_argument("--noa0", action="store_true")
    ap.add_argument("--outst", default="")
    ap.add_argument("--polls", type=int, default=12)
    ap.add_argument("--flag", default="atomic")
    ap.add_argument("--early", action="store_true")
    ap.add_argument("--noS", action="store_true")
    ap.add_argument("-o", default="/dev/stdout")
    a = ap.parse_args()
    open(a.o, "w").write(gen(a.D, a.pat, a.ld, a.stamps, a.nvgpr, not a.noa0, a.outst, a.polls, a.flag, not a.early, a.noS))
```

```python
import argparse, math, struct
NAME = "standalone__gqa_softmax__decode_kernel"
HEADER = """; Kernarg layout for this problem (48 bytes, ptrs only, base s[0:1]):
;
"""
def f32hex(x): return struct.unpack("<I", struct.pack("<f", x))[0]
def vr(a, n=1): return f"v{a}" if n == 1 else f"v[{a}:{a+n-1}]"
class E:
    def __init__(self): self.l = []
    def __call__(self, s): self.l.append("    " + s)
    def label(self, s): self.l.append(s + ":")
    def c(self, s): self.l.append("    ; " + s)
    def text(self): return "\n".join(self.l) + "\n"
DPP = "row_mask:0xf bank_mask:0xf"

def gen(D=5, ld="nt", stamps=False, nvgpr=256, a0=True, a05=True, outst="", local=True, xmap=1, force=""):
    NW = 4; N = 16
    assert 4 <= D <= 7
    ldf = (" " + ld) if ld else ""
    e = E()
    vO0, vO1, vO2 = 1, 2, 3
    vQ = 4
    vP = 8
    vX = 12; vY = 14; vS = 15
    vMx = 16; vMc = 17; vL = 18; vPD = 19
    vM = 20
    vA = 24
    vACC = 32
    vT = 36; vU = 37; vW = 38; vZ = 39
    vR = 40
    vF = 72
    slot = lambda k: vR + 4*k
    sQ, sKp, sVp, sO, sD, sWS = 4, 6, 8, 10, 12, 14
    sSK, sSV = 16, 20
    sW, sHead, sHeadB, sTmp, sC, sT = 24, 25, 26, 27, 28, 29
    sOK, sCnt, sP, sSplit, sSlot, sLocal = 30, 31, 32, 35, 36, 37
    LDS_M, LDS_L, LDS_ACC = 0, 16, 64
    lds_bytes = LDS_ACC + NW*512
    split_stride, tile_stride = 16384, 65536
    CHEX = f"0x{f32hex(128**-0.5 * math.log2(math.e)):08x}"
    def stamp(i):
        if stamps:
            e(f"s_memrealtime s[{40+2*i}:{41+2*i}]")
            if i: e("s_waitcnt lgkmcnt(0)")
    def ld_(srd, voff, j, sl, soff):
        e(f"buffer_load_dwordx4 {vr(slot(sl),4)}, v{voff}, s[{srd}:{srd+3}], {soff} offen offset:{j*1024}{ldf}")
    def dots(j, sl):
        for c in range(4):
            src2 = "0" if c == 0 else f"v{vP+j}"
            e(f"v_dot2_f32_bf16 v{vP+j}, v{slot(sl)+c}, v{vQ+c}, {src2}")
    def reduce_scores():
        e.c("sum the four partial dot products over the 16 lanes of each key row; 16 scores, one per quad")
        e("s_nop 2")
        e(f"v_add_f32_dpp v{vX}, v{vP}, v{vP} row_ror:8 row_mask:0xf bank_mask:0x3")
        e(f"v_add_f32_dpp v{vX+1}, v{vP+2}, v{vP+2} row_ror:8 row_mask:0xf bank_mask:0x3")
        e(f"v_add_f32_dpp v{vX}, v{vP+1}, v{vP+1} row_ror:8 row_mask:0xf bank_mask:0xc")
        e(f"v_add_f32_dpp v{vX+1}, v{vP+3}, v{vP+3} row_ror:8 row_mask:0xf bank_mask:0xc")
        e("s_nop 0")
        e(f"v_add_f32_dpp v{vY}, v{vX}, v{vX} row_half_mirror row_mask:0xf bank_mask:0x5")
        e(f"v_add_f32_dpp v{vY}, v{vX+1}, v{vX+1} row_half_mirror row_mask:0xf bank_mask:0xa")
        e("s_nop 1")
        e(f"v_add_f32_dpp v{vY}, v{vY}, v{vY} quad_perm:[1,0,3,2] {DPP}")
        e("s_nop 1")
        e(f"v_add_f32_dpp v{vS}, v{vY}, v{vY} quad_perm:[2,3,0,1] {DPP}")
    def wave_reduce(op, dst, src):
        e("s_nop 1")
        e(f"{op}_dpp v{dst}, v{src}, v{src} row_ror:4 {DPP}")
        e("s_nop 1")
        e(f"{op}_dpp v{dst}, v{dst}, v{dst} row_ror:8 {DPP}")
        e("s_nop 0")
        e(f"v_mov_b32 v{vU}, v{dst}")
        e("s_nop 1")
        e(f"v_permlane16_swap_b32 v{dst}, v{vU}")
        e(f"{op} v{dst}, v{dst}, v{vU}")
        e("s_nop 0")
        e(f"v_mov_b32 v{vU}, v{dst}")
        e("s_nop 1")
        e(f"v_permlane32_swap_b32 v{dst}, v{vU}")
        e(f"{op} v{dst}, v{dst}, v{vU}")
    bank_of_j = {0: 0, 2: 1, 1: 2, 3: 3}
    def a_operand(j, k):
        a = vA + 4*(k & 1)
        for r in range(4):
            e(f"v_and_b32_dpp v{a+r}, v{vPD}, v{vM+r} row_newbcast:{4*bank_of_j[j]} {DPP}")
        return a
    def mfma(a, sl):
        e(f"v_mfma_f32_16x16x32_bf16 {vr(vACC,4)}, {vr(a,4)}, {vr(slot(sl),4)}, {vr(vACC,4)}")
    def softmax_p():
        e(f"v_fma_f32 v{vW}, v{vS}, s{sC}, -v{vMc}")
        e(f"v_exp_f32 v{vW}, v{vW}")
        e("s_nop 0")
        e(f"v_add_f32 v{vL}, v{vL}, v{vW}")
        e(f"v_cvt_pk_bf16_f32 v{vPD}, v{vW}, v{vW}")
    def rescale_to(vnew):
        e(f"v_sub_f32 v{vZ}, v{vMx}, v{vnew}")
        e(f"v_mul_f32 v{vZ}, s{sC}, v{vZ}")
        e(f"v_exp_f32 v{vZ}, v{vZ}")
        e(f"v_mov_b32 v{vMx}, v{vnew}")
        e(f"v_mul_f32 v{vMc}, s{sC}, v{vnew}")
        e(f"v_mul_f32 v{vL}, v{vL}, v{vZ}")
        for r in range(4): e(f"v_mul_f32 v{vACC+r}, v{vACC+r}, v{vZ}")

    stamp(0)
    e("s_cmp_ge_u32 s2, 256")
    e("s_cbranch_scc1 L_end")
    e("s_load_dwordx4 s[4:7], s[0:1], 0                ; q, k")
    e("s_load_dwordx4 s[8:11], s[0:1], 16              ; v, out")
    e("s_load_dwordx4 s[12:15], s[0:1], 32")
    e(f"v_lshrrev_b32 v{vT}, 6, v0                      ; wave")
    e(f"v_and_b32 v{vU}, 63, v0                         ; lane")
    e(f"v_readfirstlane_b32 s{sW}, v{vT}")
    e(f"v_lshlrev_b32 v{vO0}, 4, v{vU}")
    e(f"v_lshlrev_b32 v{vT}, 12, v{vT}")
    if xmap == 1:
        e.c("head = ((wg >> 5) << 3) | (wg & 7), split = (wg >> 3) & 3: the splits of a head are 8 ids apart")
        e(f"s_lshr_b32 s{sHead}, s2, 5")
        e(f"s_lshl_b32 s{sHead}, s{sHead}, 3")
        e(f"s_and_b32 s{sTmp}, s2, 7")
        e(f"s_or_b32 s{sHead}, s{sHead}, s{sTmp}")
        e(f"s_bfe_u32 s{sSplit}, s2, 0x20003")
    else:
        e(f"s_lshr_b32 s{sHead}, s2, 2")
        e(f"s_and_b32 s{sSplit}, s2, 3")
    e(f"s_lshl_b32 s{sTmp}, s{sSplit}, 14")
    e(f"v_add3_u32 v{vO0}, v{vO0}, v{vT}, s{sTmp}")
    e(f"s_lshl_b32 s{sHeadB}, s{sHead}, 8")
    e(f"v_and_b32 v{vU}, 15, v0")
    e(f"v_lshlrev_b32 v{vU}, 4, v{vU}")
    e(f"v_add_u32 v{vU}, s{sHeadB}, v{vU}              ; q offset")
    e(f"v_add_u32 v{vO1}, {tile_stride}, v{vO0}")
    e(f"v_add_u32 v{vO2}, {2*tile_stride}, v{vO0}")
    e(f"s_lshl_b32 s{sTmp}, s{sHead}, 20")
    e(f"s_mov_b32 s{sSK+2}, 0x100000")
    e(f"s_mov_b32 s{sSK+3}, 0x20000")
    e(f"s_mov_b32 s{sSV+2}, 0x100000")
    e(f"s_mov_b32 s{sSV+3}, 0x20000")
    e(f"s_mov_b32 s{sT}, 0")
    e(f"s_cmp_eq_u32 s{sW}, 4")
    e("s_waitcnt lgkmcnt(0)")
    e("s_cbranch_scc1 L_helper")
    e(f"s_add_u32 s{sSK}, s{sKp}, s{sTmp}")
    e(f"s_addc_u32 s{sSK+1}, s{sKp+1}, 0")
    e(f"global_load_dwordx4 {vr(vQ,4)}, v{vU}, s[{sQ}:{sQ+1}]")
    def issue_pro(idx):
        if idx < 4:   ld_(sSK, vO0, idx, 4+idx, "0")
        elif idx < 8: ld_(sSK, vO1, idx-4, idx-4, "0")
        else:         ld_(sSV, vO0, idx-8, 4+idx-8, "0")
    for idx in range(D): issue_pro(idx)
    e(f"s_add_u32 s{sSV}, s{sVp}, s{sTmp}")
    e(f"s_addc_u32 s{sSV+1}, s{sVp+1}, 0")
    e.c("constants, while the first loads are in flight: A-operand masks select element (lane&15) of 8")
    e(f"s_mov_b32 s{sC}, {CHEX}")
    e(f"v_and_b32 v{vT}, 15, v0")
    e(f"v_and_b32 v{vX}, 1, v{vT}")
    e(f"v_mov_b32 v{vX+1}, 0xffff")
    e(f"v_lshlrev_b32 v{vX}, 4, v{vX}")
    e(f"v_lshlrev_b32 v{vX}, v{vX}, v{vX+1}")
    e(f"v_lshrrev_b32 v{vX+1}, 1, v{vT}")
    for r in range(4):
        e(f"v_cmp_eq_u32 vcc, {r}, v{vX+1}")
        e(f"v_mov_b32 v{vACC+r}, 0")
        e("s_nop 0")
        e(f"v_cndmask_b32 v{vM+r}, 0, v{vX}, vcc")
    e.c("tile 0 scores")
    for n in range(4):
        e(f"s_waitcnt vmcnt({D-1})")
        issue_pro(n + D)
        dots(n, 4+n)
    reduce_scores()
    wave_reduce("v_max_f32", vMx, vS)
    e(f"v_mul_f32 v{vMc}, s{sC}, v{vMx}")
    e(f"v_mov_b32 v{vL}, 0")
    softmax_p()
    stamp(2)
    def body(last):
        ipos = D
        for p in range(8):
            if p >= 4: a = a_operand(p-4, p)
            e(f"s_waitcnt vmcnt({ipos - 1 - p})")
            tgt = min(p + D, 11) if last else p + D
            issued = False
            while ipos <= tgt:
                q = ipos
                if q < 8:    ld_(sSV, vO0, q-4, q, f"s{sT}")
                elif q < 12:
                    if last: ld_(sSV, vO1, q-8, q-8, f"s{sT}")
                    else:    ld_(sSK, vO2, q-8, q-8, f"s{sT}")
                else: ld_(sSV, vO1, q-12, q-8, f"s{sT}")
                ipos += 1; issued = True
            if p < 4:
                dots(p, p)
                if p == 3: reduce_scores()
            else:
                if not issued: e("s_nop 0")
                mfma(a, p)
    e.c("iteration i: scores of tile i+1, P.V of tile i; loads run a fixed distance ahead")
    e.label("L_loop")
    body(False)
    e.c("online softmax: a new running maximum rescales the sums")
    e(f"v_cmp_gt_f32 vcc, v{vS}, v{vMx}")
    e(f"s_add_u32 s{sT}, s{sT}, {tile_stride}")
    e("s_cbranch_vccz L_nomax")
    wave_reduce("v_max_f32", vT, vS)
    e(f"v_max_f32 v{vT}, v{vT}, v{vMx}")
    rescale_to(vT)
    e.label("L_nomax")
    softmax_p()
    e(f"s_cmp_lt_u32 s{sT}, {(N-2)*tile_stride}")
    e("s_cbranch_scc1 L_loop")
    stamp(3)
    e("s_barrier")
    body(True)
    e.c("last tile: bring the four waves to their common maximum")
    wave_reduce("v_max_f32", vT, vS)
    e(f"v_max_f32 v{vT}, v{vT}, v{vMx}")
    e(f"s_lshl_b32 s{sTmp}, s{sW}, 2")
    e(f"v_mov_b32 v{vU}, s{sTmp}")
    e(f"ds_write_b32 v{vU}, v{vT} offset:{LDS_M}")
    e(f"v_mov_b32 v{vW}, 0")
    e("s_waitcnt lgkmcnt(0)")
    e("s_barrier")
    e(f"ds_read_b128 {vr(vF,4)}, v{vW} offset:{LDS_M}")
    e("s_waitcnt lgkmcnt(0)")
    e(f"v_max3_f32 v{vT}, v{vF}, v{vF+1}, v{vF+2}")
    e(f"v_max_f32 v{vT}, v{vT}, v{vF+3}")
    rescale_to(vT)
    softmax_p()
    wave_reduce("v_add_f32", vT, vL)
    e(f"v_mov_b32 v{vU}, s{sTmp}")
    e(f"ds_write_b32 v{vU}, v{vT} offset:{LDS_L}")
    e(f"v_and_b32 v{vW}, 63, v0")
    e(f"v_lshlrev_b32 v{vW}, 4, v{vW}")
    e(f"s_lshl_b32 s{sTmp}, s{sW}, 9")
    e(f"v_add_u32 v{vZ}, s{sTmp}, v{vW}")
    for j in range(4):
        a = a_operand(j, j)
        e(f"s_waitcnt vmcnt({3-j})")
        e("s_nop 0")
        mfma(a, j)
    stamp(4)
    e("s_mov_b32 exec_hi, 0")
    e("s_nop 6")
    e(f"ds_write_b128 v{vZ}, {vr(vACC,4)} offset:{LDS_ACC}")
    e("s_waitcnt lgkmcnt(0)")
    e("s_barrier")
    e("s_endpgm")
    e.label("L_helper")
    hL16, hA, hB, hF, hO = 8, 9, 10, 11, 6
    G = 12
    def Gk(k): return G + 8*(k-1)
    OWN = 36
    T1, U, FO = 44, 48, 52
    R = 56
    vAcc = lambda k: 2 + k
    vMl = lambda k: R + k
    e(f"v_and_b32 v{hL16}, 63, v0")
    e(f"v_lshlrev_b32 v{hL16}, 4, v{hL16}")
    e(f"s_lshl_b32 s{sSlot}, s{sHead}, 2")
    e(f"s_or_b32 s{sSlot}, s{sSlot}, s{sSplit}")
    for k in (1, 2, 3):
        e(f"s_xor_b32 s{sP+k-1}, s{sSlot}, {k}")
        e(f"s_lshl_b32 s{sP+k-1}, s{sP+k-1}, 10")
    e(f"s_lshl_b32 s{sSlot}, s{sSlot}, 10")
    e(f"v_add_u32 v{hA}, s{sSlot}, v{hL16}")
    for r in range(4): e(f"v_mov_b32 v{R+r}, -1")
    e(f"global_store_dwordx4 v{hA}, {vr(R,4)}, s[{sWS}:{sWS+1}] sc1")
    e(f"s_lshl_b32 s{sTmp}, s{sHead}, 2")
    e(f"v_mov_b32 v{hB}, s{sTmp}")
    e.c("count: 1 in the low byte, the id of this die in the nibble of this split")
    e(f"s_getreg_b32 s{sTmp}, hwreg(HW_REG_XCC_ID, 0, 4)")
    e(f"s_lshl_b32 s{sCnt}, s{sSplit}, 2")
    e(f"s_add_u32 s{sCnt}, s{sCnt}, 8")
    e(f"s_lshl_b32 s{sTmp}, s{sTmp}, s{sCnt}")
    e(f"s_or_b32 s{sTmp}, s{sTmp}, 1")
    e(f"v_mov_b32 v{hF}, s{sTmp}")
    e(f"s_mov_b32 s{sC}, {CHEX}")
    e.c("output offset: head*256 + (lane&15)*16 + (lane>>4)*8")
    e(f"v_lshrrev_b32 v{hO}, 8, v{hL16}")
    e(f"v_and_b32 v{hA}, 0xf0, v{hL16}")
    e(f"v_lshlrev_b32 v{hO}, 3, v{hO}")
    e(f"v_add3_u32 v{hO}, v{hO}, v{hA}, s{sHeadB}")
    e("s_mov_b32 exec_hi, 0")
    e("s_mov_b32 exec_lo, 1")
    e(f"s_mov_b32 s{sOK}, 0")
    e(f"s_mov_b32 s{sLocal}, 0")
    e("s_waitcnt vmcnt(0)")
    stamp(2)
    e(f"global_atomic_add v{hB}, v{hF}, s[{sD}:{sD+1}]")
    e("s_barrier                                       ; barrier 0")
    e(f"global_load_dword v{hF}, v{hB}, s[{sD}:{sD+1}] sc1")
    e("s_waitcnt vmcnt(0)")
    e(f"v_readfirstlane_b32 s{sTmp}, v{hF}")
    e(f"s_and_b32 s{sCnt}, s{sTmp}, 0xff")
    e(f"s_cmp_lg_u32 s{sCnt}, 4")
    e("s_cbranch_scc1 L_flags_done")
    e(f"s_mov_b32 s{sOK}, 1")
    if local:
        e(f"s_lshr_b32 s{sTmp}, s{sTmp}, 8")
        e(f"s_and_b32 s{sCnt}, s{sTmp}, 0xf")
        e(f"s_mul_i32 s{sCnt}, s{sCnt}, 0x1111")
        e(f"s_cmp_lg_u32 s{sCnt}, s{sTmp}")
        e("s_cbranch_scc1 L_flags_done")
        e(f"s_mov_b32 s{sLocal}, 1")
    if force == "slow":
        e(f"s_mov_b32 s{sOK}, 0"); e(f"s_mov_b32 s{sLocal}, 0")
    if force == "slowodd":
        e(f"s_bitcmp1_b32 s{sSplit}, 0"); e("s_cbranch_scc0 L_flags_done"); e(f"s_mov_b32 s{sOK}, 0"); e(f"s_mov_b32 s{sLocal}, 0")
    e.label("L_flags_done")
    stamp(3)
    e("s_mov_b32 exec_lo, -1")
    for k in (1, 2, 3):
        e(f"v_add_u32 v{vAcc(k)}, s{sP+k-1}, v{hL16}")
        e(f"v_mov_b32 v{vMl(k)}, s{sP+k-1}")
    e(f"v_mov_b32 v{hA}, 0")
    def attempt_loads():
        for k in (1, 2, 3):
            e(f"global_load_dwordx4 {vr(Gk(k),4)}, v{vAcc(k)}, s[{sWS}:{sWS+1}] sc1")
            e(f"global_load_dwordx2 {vr(Gk(k)+4,2)}, v{vMl(k)}, s[{sWS}:{sWS+1}] offset:512 sc1")
    def check(fail_label):
        e("s_waitcnt vmcnt(0)")
        X = R + 4
        e(f"v_max3_u32 v{X}, v{Gk(1)}, v{Gk(1)+1}, v{Gk(1)+2}")
        e(f"v_max3_u32 v{X+1}, v{Gk(2)}, v{Gk(2)+1}, v{Gk(2)+2}")
        e(f"v_max3_u32 v{X+2}, v{Gk(3)}, v{Gk(3)+1}, v{Gk(3)+2}")
        for k in (1, 2, 3):
            e(f"v_max3_u32 v{X+k-1}, v{X+k-1}, v{Gk(k)+3}, v{Gk(k)+4}")
        e(f"v_max3_u32 v{X}, v{X}, v{Gk(1)+5}, v{Gk(2)+5}")
        e(f"v_max3_u32 v{X+1}, v{X+1}, v{X+2}, v{Gk(3)+5}")
        e(f"v_max_u32 v{X}, v{X}, v{X+1}")
        e(f"v_cmp_eq_u32 vcc, -1, v{X}")
        e(f"s_cbranch_vccnz {fail_label}")
    def pkmul(d, a, f):
        lo = f & ~1
        sel = f & 1
        e(f"v_pk_mul_f32 {vr(d,2)}, {vr(a,2)}, {vr(lo,2)} op_sel:[0,{sel}] op_sel_hi:[1,{sel}]")
    def precompute():
        X = R + 4
        e(f"v_max3_f32 v{X}, v{OWN+4}, v{Gk(1)+4}, v{Gk(2)+4}")
        e(f"v_max_f32 v{X}, v{X}, v{Gk(3)+4}")
        e(f"v_sub_f32 v{FO}, v{OWN+4}, v{X}")
        for k in (1, 2, 3): e(f"v_sub_f32 v{X+k}, v{Gk(k)+4}, v{X}")
        e(f"v_exp_f32 v{FO}, v{FO}")
        for k in (1, 2, 3): e(f"v_exp_f32 v{X+k}, v{X+k}")
        e("s_nop 0")
        for h in (0, 2): pkmul(T1+h, Gk(1)+h, X+1)
        for h in (0, 2): pkmul(U+h, Gk(2)+h, X+2)
        for h in (0, 2): pkmul(Gk(3)+h, Gk(3)+h, X+3)
        e(f"v_mul_f32 v{FO+1}, v{X+1}, v{Gk(1)+5}")
        e(f"v_mul_f32 v{FO+2}, v{X+2}, v{Gk(2)+5}")
        e(f"v_mul_f32 v{X+3}, v{X+3}, v{Gk(3)+5}")
        for h in (0, 2): e(f"v_pk_add_f32 {vr(U+h,2)}, {vr(U+h,2)}, {vr(Gk(3)+h,2)}")
        e(f"v_add_f32 v{FO+2}, v{FO+2}, v{X+3}")
    e("s_barrier                                       ; barrier 1")
    stamp(4)
    if a0:
        e(f"s_cmp_eq_u32 s{sOK}, 0")
        e("s_cbranch_scc1 L_no_a0_loads")
        attempt_loads()
        e.label("L_no_a0_loads")
    e(f"ds_read_b128 {vr(R+8,4)}, v{hA} offset:{LDS_M}")
    e("s_waitcnt lgkmcnt(0)")
    e(f"v_max3_f32 v{R+8}, v{R+8}, v{R+9}, v{R+10}")
    e(f"v_max_f32 v{R+8}, v{R+8}, v{R+11}")
    e(f"v_mul_f32 v{OWN+4}, s{sC}, v{R+8}")
    e(f"s_mov_b32 s{sCnt}, 0")
    if a0:
        e(f"s_cmp_eq_u32 s{sOK}, 0")
        e("s_cbranch_scc1 L_a0_done")
        check("L_a0_done")
        precompute()
        e(f"s_mov_b32 s{sCnt}, 1")
        e.label("L_a0_done")
    e("s_barrier                                       ; barrier 2")
    stamp(5)
    if a05:
        e(f"s_cmp_lt_u32 s{sCnt}, s{sOK}")
        e("s_cbranch_scc0 L_no_a05_loads")
        attempt_loads()
        e.label("L_no_a05_loads")
    for w in range(4):
        e(f"ds_read_b128 {vr(R+8+4*w,4)}, v{hL16} offset:{LDS_ACC + 512*w}")
    e(f"ds_read_b128 {vr(R+24,4)}, v{hA} offset:{LDS_L}")
    e("s_waitcnt lgkmcnt(3)")
    e(f"v_pk_add_f32 {vr(R+8,2)}, {vr(R+8,2)}, {vr(R+12,2)}")
    e(f"v_pk_add_f32 {vr(R+10,2)}, {vr(R+10,2)}, {vr(R+14,2)}")
    e("s_waitcnt lgkmcnt(1)")
    e(f"v_pk_add_f32 {vr(R+16,2)}, {vr(R+16,2)}, {vr(R+20,2)}")
    e(f"v_pk_add_f32 {vr(R+18,2)}, {vr(R+18,2)}, {vr(R+22,2)}")
    e("s_waitcnt lgkmcnt(0)")
    e(f"v_add_f32 v{R+24}, v{R+24}, v{R+25}")
    e(f"v_add_f32 v{R+26}, v{R+26}, v{R+27}")
    e(f"v_pk_add_f32 {vr(OWN,2)}, {vr(R+8,2)}, {vr(R+16,2)}")
    e(f"v_pk_add_f32 {vr(OWN+2,2)}, {vr(R+10,2)}, {vr(R+18,2)}")
    e(f"v_add_f32 v{OWN+5}, v{R+24}, v{R+26}")
    e(f"s_cmp_eq_u32 s{sCnt}, 1")
    e("s_cbranch_scc1 L_final")
    if a05:
        e(f"s_cmp_eq_u32 s{sOK}, 0")
        e("s_cbranch_scc1 L_publish")
        check("L_publish")
        e("s_branch L_scale")
        e.label("L_publish")
    for r in range(6): e(f"v_min_u32 v{OWN+r}, 0xfffffffe, v{OWN+r}")
    e(f"v_add_u32 v{hB}, s{sSlot}, v{hL16}")
    e(f"v_mov_b32 v{hF}, s{sSlot}")
    if local:
        e(f"s_cmp_eq_u32 s{sLocal}, 1")
        e("s_cbranch_scc1 L_pub_local")
    e(f"global_store_dwordx4 v{hB}, {vr(OWN,4)}, s[{sWS}:{sWS+1}] sc1")
    e(f"global_store_dwordx2 v{hF}, {vr(OWN+4,2)}, s[{sWS}:{sWS+1}] offset:512 sc1")
    if local:
        e("s_branch L_pub_done")
        e.label("L_pub_local")
        e(f"global_store_dwordx4 v{hB}, {vr(OWN,4)}, s[{sWS}:{sWS+1}]")
        e(f"global_store_dwordx2 v{hF}, {vr(OWN+4,2)}, s[{sWS}:{sWS+1}] offset:512")
        e.label("L_pub_done")
    e(f"s_mov_b32 s{sCnt}, 2")
    e(f"s_cmp_eq_u32 s{sOK}, 1")
    e("s_cbranch_scc1 L_try")
    e.c("not all four had been counted: look at the count again once the own hand-off has landed")
    e(f"s_lshl_b32 s{sTmp}, s{sHead}, 2")
    e(f"v_mov_b32 v{hB}, s{sTmp}")
    e("s_waitcnt vmcnt(0)")
    e(f"global_load_dword v{hF}, v{hB}, s[{sD}:{sD+1}] sc1")
    e("s_waitcnt vmcnt(0)")
    e(f"v_readfirstlane_b32 s{sTmp}, v{hF}")
    e(f"s_mov_b32 s{sCnt}, 1")
    e(f"s_and_b32 s{sTmp}, s{sTmp}, 0xff")
    e(f"s_cmp_lg_u32 s{sTmp}, 4")
    e("s_cbranch_scc1 L_exit")
    e.label("L_try")
    attempt_loads()
    check("L_try_fail")
    e.label("L_scale")
    precompute()
    e.label("L_final")
    e.c("out = ((f0 a0 + f1 a1) + (f2 a2 + f3 a3)) / (same over l); pairs by slot, so every finisher gets the same bits")
    e(f"v_mul_f32 v{R+9}, v{FO}, v{OWN+5}")
    for h in (0, 2): pkmul(OWN+h, OWN+h, FO)
    e(f"v_add_f32 v{R+9}, v{R+9}, v{FO+1}")
    for h in (0, 2): e(f"v_pk_add_f32 {vr(OWN+h,2)}, {vr(OWN+h,2)}, {vr(T1+h,2)}")
    e(f"v_add_f32 v{R+9}, v{R+9}, v{FO+2}")
    for h in (0, 2): e(f"v_pk_add_f32 {vr(OWN+h,2)}, {vr(OWN+h,2)}, {vr(U+h,2)}")
    e(f"v_rcp_f32 v{R+8}, v{R+9}")
    e("s_nop 0")
    for h in (0, 2): pkmul(OWN+h, OWN+h, R+8)
    e(f"v_cvt_pk_bf16_f32 v{R}, v{OWN}, v{OWN+1}")
    e(f"v_cvt_pk_bf16_f32 v{R+1}, v{OWN+2}, v{OWN+3}")
    e(f"global_store_dwordx2 v{hO}, {vr(R,2)}, s[{sO}:{sO+1}]{(' ' + outst) if outst else ''}")
    if stamps:
        e("s_waitcnt vmcnt(0)")
        e(f"s_mov_b32 s{sCnt}, 3")
        e("s_branch L_exit_stamp")
    else:
        e("s_endpgm")
    e.label("L_try_fail")
    e(f"s_sub_u32 s{sCnt}, s{sCnt}, 1")
    e(f"s_cmp_lg_u32 s{sCnt}, 0")
    e("s_cbranch_scc1 L_try")
    e.label("L_exit")
    if stamps:
        e(f"s_mov_b32 s{sCnt}, 0")
        e.label("L_exit_stamp")
        stamp(6)
        e(f"s_lshl_b32 s33, s2, 6")
        e(f"s_add_u32 s33, s33, 0x4000000")
        e(f"v_mov_b32 v{hB}, s33")
        e(f"s_lshl_b32 s34, s{sLocal}, 1")
        e(f"s_or_b32 s34, s34, s{sOK}")
        for i, sr in enumerate((40, 42, 44, 46, 48, 50, 52, sCnt)): e(f"v_mov_b32 v{R+i}, s{sr}")
        e(f"v_mov_b32 v{R+8}, s52"); e(f"v_mov_b32 v{R+9}, s34")
        e("s_getreg_b32 s38, hwreg(HW_REG_HW_ID)"); e("s_getreg_b32 s39, hwreg(HW_REG_XCC_ID)")
        e(f"v_mov_b32 v{R+10}, s38"); e(f"v_mov_b32 v{R+11}, s39")
        e(f"global_store_dwordx4 v{hB}, {vr(R,4)}, s[{sWS}:{sWS+1}]")
        e(f"global_store_dwordx4 v{hB}, {vr(R+4,4)}, s[{sWS}:{sWS+1}] offset:16")
        e(f"global_store_dwordx4 v{hB}, {vr(R+8,4)}, s[{sWS}:{sWS+1}] offset:32")
    e.label("L_end")
    e("s_endpgm")
    out = HEADER + f"; @launch grid=(256,1,1) block=({NW*64+64},1,1) lds={lds_bytes}\n"
    out += f""".amdgcn_target "amdgcn-amd-amdhsa--gfx950"
.text
.globl {NAME}
.p2align 8
.type {NAME},@function
{NAME}:
""" + e.text() + f""".section .rodata,"a"
.p2align 6
.amdhsa_kernel {NAME}
  .amdhsa_next_free_vgpr {nvgpr}
  .amdhsa_next_free_sgpr 64
  .amdhsa_accum_offset {min(256, nvgpr)}
  .amdhsa_group_segment_fixed_size 0
  .amdhsa_kernarg_size 48
  .amdhsa_user_sgpr_count 2
  .amdhsa_user_sgpr_kernarg_segment_ptr 1
  .amdhsa_system_sgpr_workgroup_id_x 1
  .amdhsa_float_denorm_mode_32 3
.end_amdhsa_kernel
"""
    return out

if __name__ == "__main__":
    ap = argparse.ArgumentParser()
    ap.add_argument("-D", type=int, default=5)
    ap.add_argument("--ld", default="nt")
    ap.add_argument("--stamps", action="store_true")
    ap.add_argument("--noa0", action="store_true")
    ap.add_argument("--noa05", action="store_true")
    ap.add_argument("--nolocal", action="store_true")
    ap.add_argument("--xmap", type=int, default=1)
    ap.add_argument("--outst", default="")
    ap.add_argument("--force", default="")
    ap.add_argument("-o", default="/dev/stdout")
    a = ap.parse_args()
    open(a.o, "w").write(gen(a.D, a.ld, a.stamps, 256, not a.noa0, not a.noa05, a.outst, not a.nolocal, a.xmap, a.force))
```

```python
import argparse, math, struct
NAME = "standalone__gqa_softmax__decode_kernel"
HEADER = """; Kernarg layout for this problem (48 bytes, ptrs only, base s[0:1]):
;
"""
def f32hex(x): return struct.unpack("<I", struct.pack("<f", x))[0]
def vr(a, n=1): return f"v{a}" if n == 1 else f"v[{a}:{a+n-1}]"
class E:
    def __init__(self): self.l = []
    def __call__(self, s): self.l.append("    " + s)
    def label(self, s): self.l.append(s + ":")
    def c(self, s): self.l.append("    ; " + s)
    def text(self): return "\n".join(self.l) + "\n"
DPP = "row_mask:0xf bank_mask:0xf"

def gen(D=5, ld="nt", stamps=False, nvgpr=256, a0=True, a05=True, outst="", local=True, xmap=1, force="", s33=False, dpat=None, diag=""):
    NW = 4; N = 16
    if dpat is None: dpat = [D]*8
    D = dpat[7]
    assert 4 <= D <= 7 and all(4 <= d <= 7 for d in dpat)
    ldf = (" " + ld) if ld else ""
    e = E()
    vO0, vO1, vO2 = 1, 2, 3
    vQ = 4
    vP = 8
    vX = 12; vY = 14; vS = 15
    vMx = 16; vMc = 17; vL = 18; vPD = 19
    vM = 20
    vA = 24
    vACC = 32
    vT = 36; vU = 37; vW = 38; vZ = 39
    vR = 40
    vF = 72
    slot = lambda k: vR + 4*k
    sQ, sKp, sVp, sO, sD, sWS = 4, 6, 8, 10, 12, 14
    sSK, sSV = 16, 20
    sW, sHead, sHeadB, sTmp, sC, sT = 24, 25, 26, 27, 28, 29
    sOK, sCnt, sP, sSplit, sSlot, sLocal = 30, 31, 32, 35, 36, 37
    LDS_M, LDS_L, LDS_ACC = 0, 16, 64
    lds_bytes = LDS_ACC + NW*512
    split_stride, tile_stride = 16384, 65536
    CHEX = f"0x{f32hex(128**-0.5 * math.log2(math.e)):08x}"
    def stamp(i):
        if stamps:
            e(f"s_memrealtime s[{40+2*i}:{41+2*i}]")
            if i: e("s_waitcnt lgkmcnt(0)")
    def ld_(srd, voff, j, sl, soff):
        e(f"buffer_load_dwordx4 {vr(slot(sl),4)}, v{voff}, s[{srd}:{srd+3}], {soff} offen offset:{j*1024}{ldf}")
    def dots(j, sl):
        for c in range(4):
            src2 = "0" if c == 0 else f"v{vP+j}"
            e(f"v_dot2_f32_bf16 v{vP+j}, v{slot(sl)+c}, v{vQ+c}, {src2}")
    def reduce_scores():
        e.c("sum the four partial dot products over the 16 lanes of each key row; 16 scores, one per quad")
        e("s_nop 2")
        e(f"v_add_f32_dpp v{vX}, v{vP}, v{vP} row_ror:8 row_mask:0xf bank_mask:0x3")
        e(f"v_add_f32_dpp v{vX+1}, v{vP+2}, v{vP+2} row_ror:8 row_mask:0xf bank_mask:0x3")
        e(f"v_add_f32_dpp v{vX}, v{vP+1}, v{vP+1} row_ror:8 row_mask:0xf bank_mask:0xc")
        e(f"v_add_f32_dpp v{vX+1}, v{vP+3}, v{vP+3} row_ror:8 row_mask:0xf bank_mask:0xc")
        e("s_nop 0")
        e(f"v_add_f32_dpp v{vY}, v{vX}, v{vX} row_half_mirror row_mask:0xf bank_mask:0x5")
        e(f"v_add_f32_dpp v{vY}, v{vX+1}, v{vX+1} row_half_mirror row_mask:0xf bank_mask:0xa")
        e("s_nop 1")
        e(f"v_add_f32_dpp v{vY}, v{vY}, v{vY} quad_perm:[1,0,3,2] {DPP}")
        e("s_nop 1")
        e(f"v_add_f32_dpp v{vS}, v{vY}, v{vY} quad_perm:[2,3,0,1] {DPP}")
    def wave_reduce(op, dst, src):
        e("s_nop 1")
        e(f"{op}_dpp v{dst}, v{src}, v{src} row_ror:4 {DPP}")
        e("s_nop 1")
        e(f"{op}_dpp v{dst}, v{dst}, v{dst} row_ror:8 {DPP}")
        e("s_nop 0")
        e(f"v_mov_b32 v{vU}, v{dst}")
        e("s_nop 1")
        e(f"v_permlane16_swap_b32 v{dst}, v{vU}")
        e(f"{op} v{dst}, v{dst}, v{vU}")
        e("s_nop 0")
        e(f"v_mov_b32 v{vU}, v{dst}")
        e("s_nop 1")
        e(f"v_permlane32_swap_b32 v{dst}, v{vU}")
        e(f"{op} v{dst}, v{dst}, v{vU}")
    bank_of_j = {0: 0, 2: 1, 1: 2, 3: 3}
    def a_operand(j, k):
        a = vA + 4*(k & 1)
        for r in range(4 if "M" not in diag else 0):
            e(f"v_and_b32_dpp v{a+r}, v{vPD}, v{vM+r} row_newbcast:{4*bank_of_j[j]} {DPP}")
        return a
    def mfma(a, sl):
        e(f"v_mfma_f32_16x16x32_bf16 {vr(vACC,4)}, {vr(a,4)}, {vr(slot(sl),4)}, {vr(vACC,4)}")
    def softmax_p():
        e(f"v_fma_f32 v{vW}, v{vS}, s{sC}, -v{vMc}")
        e(f"v_exp_f32 v{vW}, v{vW}")
        e("s_nop 0")
        e(f"v_add_f32 v{vL}, v{vL}, v{vW}")
        e(f"v_cvt_pk_bf16_f32 v{vPD}, v{vW}, v{vW}")
    def rescale_to(vnew):
        e(f"v_sub_f32 v{vZ}, v{vMx}, v{vnew}")
        e(f"v_mul_f32 v{vZ}, s{sC}, v{vZ}")
        e(f"v_exp_f32 v{vZ}, v{vZ}")
        e(f"v_mov_b32 v{vMx}, v{vnew}")
        e(f"v_mul_f32 v{vMc}, s{sC}, v{vnew}")
        e(f"v_mul_f32 v{vL}, v{vL}, v{vZ}")
        for r in range(4): e(f"v_mul_f32 v{vACC+r}, v{vACC+r}, v{vZ}")

    stamp(0)
    e("s_cmp_ge_u32 s2, 256")
    e("s_cbranch_scc1 L_end")
    e("s_load_dwordx4 s[4:7], s[0:1], 0                ; q, k")
    e("s_load_dwordx4 s[8:11], s[0:1], 16              ; v, out")
    e("s_load_dwordx4 s[12:15], s[0:1], 32")
    e(f"v_lshrrev_b32 v{vT}, 6, v0                      ; wave")
    e(f"v_and_b32 v{vU}, 63, v0                         ; lane")
    e(f"v_readfirstlane_b32 s{sW}, v{vT}")
    e(f"v_lshlrev_b32 v{vO0}, 4, v{vU}")
    e(f"v_lshlrev_b32 v{vT}, 12, v{vT}")
    if xmap == 1:
        e.c("head = ((wg >> 5) << 3) | (wg & 7), split = (wg >> 3) & 3: the splits of a head are 8 ids apart")
        e(f"s_lshr_b32 s{sHead}, s2, 5")
        e(f"s_lshl_b32 s{sHead}, s{sHead}, 3")
        e(f"s_and_b32 s{sTmp}, s2, 7")
        e(f"s_or_b32 s{sHead}, s{sHead}, s{sTmp}")
        e(f"s_bfe_u32 s{sSplit}, s2, 0x20003")
    else:
        e(f"s_lshr_b32 s{sHead}, s2, 2")
        e(f"s_and_b32 s{sSplit}, s2, 3")
    e(f"s_lshl_b32 s{sTmp}, s{sSplit}, 14")
    e(f"v_add3_u32 v{vO0}, v{vO0}, v{vT}, s{sTmp}")
    e(f"s_lshl_b32 s{sHeadB}, s{sHead}, 8")
    e(f"v_and_b32 v{vU}, 15, v0")
    e(f"v_lshlrev_b32 v{vU}, 4, v{vU}")
    e(f"v_add_u32 v{vU}, s{sHeadB}, v{vU}              ; q offset")
    e(f"v_add_u32 v{vO1}, {tile_stride}, v{vO0}")
    e(f"v_add_u32 v{vO2}, {2*tile_stride}, v{vO0}")
    e(f"s_lshl_b32 s{sTmp}, s{sHead}, 20")
    e(f"s_mov_b32 s{sSK+2}, 0x100000")
    e(f"s_mov_b32 s{sSK+3}, 0x20000")
    e(f"s_mov_b32 s{sSV+2}, 0x100000")
    e(f"s_mov_b32 s{sSV+3}, 0x20000")
    e(f"s_mov_b32 s{sT}, 0")
    e(f"s_cmp_eq_u32 s{sW}, 4")
    e("s_waitcnt lgkmcnt(0)")
    e("s_cbranch_scc1 L_helper")
    e(f"s_add_u32 s{sSK}, s{sKp}, s{sTmp}")
    e(f"s_addc_u32 s{sSK+1}, s{sKp+1}, 0")
    e(f"global_load_dwordx4 {vr(vQ,4)}, v{vU}, s[{sQ}:{sQ+1}]")
    def issue_pro(idx):
        if idx < 4:   ld_(sSK, vO0, idx, 4+idx, "0")
        elif idx < 8: ld_(sSK, vO1, idx-4, idx-4, "0")
        else:         ld_(sSV, vO0, idx-8, 4+idx-8, "0")
    for idx in range(D): issue_pro(idx)
    e(f"s_add_u32 s{sSV}, s{sVp}, s{sTmp}")
    e(f"s_addc_u32 s{sSV+1}, s{sVp+1}, 0")
    e.c("constants, while the first loads are in flight: A-operand masks select element (lane&15) of 8")
    e(f"s_mov_b32 s{sC}, {CHEX}")
    e(f"v_and_b32 v{vT}, 15, v0")
    e(f"v_and_b32 v{vX}, 1, v{vT}")
    e(f"v_mov_b32 v{vX+1}, 0xffff")
    e(f"v_lshlrev_b32 v{vX}, 4, v{vX}")
    e(f"v_lshlrev_b32 v{vX}, v{vX}, v{vX+1}")
    e(f"v_lshrrev_b32 v{vX+1}, 1, v{vT}")
    for r in range(4):
        e(f"v_cmp_eq_u32 vcc, {r}, v{vX+1}")
        e(f"v_mov_b32 v{vACC+r}, 0")
        e("s_nop 0")
        e(f"v_cndmask_b32 v{vM+r}, 0, v{vX}, vcc")
    e.c("tile 0 scores")
    for n in range(4):
        e(f"s_waitcnt vmcnt({D-1})")
        issue_pro(n + D)
        dots(n, 4+n)
    reduce_scores()
    wave_reduce("v_max_f32", vMx, vS)
    e(f"v_mul_f32 v{vMc}, s{sC}, v{vMx}")
    e(f"v_mov_b32 v{vL}, 0")
    softmax_p()
    stamp(2)
    def body(last):
        ipos = D
        for p in range(8):
            if p >= 4: a = a_operand(p-4, p)
            e(f"s_waitcnt vmcnt({ipos - 1 - p})")
            tgt = min(p + dpat[p], 11) if last else p + dpat[p]
            issued = False
            while ipos <= tgt:
                q = ipos
                if q < 8:    ld_(sSV, vO0, q-4, q, f"s{sT}")
                elif q < 12:
                    if last: ld_(sSV, vO1, q-8, q-8, f"s{sT}")
                    else:    ld_(sSK, vO2, q-8, q-8, f"s{sT}")
                else: ld_(sSV, vO1, q-12, q-8, f"s{sT}")
                ipos += 1; issued = True
            if p < 4:
                if "C" not in diag or last:
                    dots(p, p)
                    if p == 3: reduce_scores()
            else:
                if not issued: e("s_nop 0")
                mfma(a, p)
        assert last or ipos == 8 + D
    e.c("iteration i: scores of tile i+1, P.V of tile i; loads run a fixed distance ahead")
    e.label("L_loop")
    body(False)
    e.c("online softmax: a new running maximum rescales the sums")
    if "C" in diag:
        e(f"s_add_u32 s{sT}, s{sT}, {tile_stride}")
    else:
        e(f"v_cmp_gt_f32 vcc, v{vS}, v{vMx}")
        e(f"s_add_u32 s{sT}, s{sT}, {tile_stride}")
        e("s_cbranch_vccz L_nomax")
        wave_reduce("v_max_f32", vT, vS)
        e(f"v_max_f32 v{vT}, v{vT}, v{vMx}")
        rescale_to(vT)
        e.label("L_nomax")
        softmax_p()
    e(f"s_cmp_lt_u32 s{sT}, {(N-2)*tile_stride}")
    e("s_cbranch_scc1 L_loop")
    stamp(3)
    e("s_barrier")
    body(True)
    e.c("last tile: bring the four waves to their common maximum")
    wave_reduce("v_max_f32", vT, vS)
    e(f"v_max_f32 v{vT}, v{vT}, v{vMx}")
    e(f"s_lshl_b32 s{sTmp}, s{sW}, 2")
    e(f"v_mov_b32 v{vU}, s{sTmp}")
    e(f"ds_write_b32 v{vU}, v{vT} offset:{LDS_M}")
    e(f"v_mov_b32 v{vW}, 0")
    e("s_waitcnt lgkmcnt(0)")
    e("s_barrier")
    e(f"ds_read_b128 {vr(vF,4)}, v{vW} offset:{LDS_M}")
    e("s_waitcnt lgkmcnt(0)")
    e(f"v_max3_f32 v{vT}, v{vF}, v{vF+1}, v{vF+2}")
    e(f"v_max_f32 v{vT}, v{vT}, v{vF+3}")
    rescale_to(vT)
    softmax_p()
    wave_reduce("v_add_f32", vT, vL)
    e(f"v_mov_b32 v{vU}, s{sTmp}")
    e(f"ds_write_b32 v{vU}, v{vT} offset:{LDS_L}")
    e(f"v_and_b32 v{vW}, 63, v0")
    e(f"v_lshlrev_b32 v{vW}, 4, v{vW}")
    e(f"s_lshl_b32 s{sTmp}, s{sW}, 9")
    e(f"v_add_u32 v{vZ}, s{sTmp}, v{vW}")
    for j in range(4):
        a = a_operand(j, j)
        e(f"s_waitcnt vmcnt({3-j})")
        e("s_nop 0")
        mfma(a, j)
    stamp(4)
    e("s_mov_b32 exec_hi, 0")
    e("s_nop 7")
    e(f"ds_write_b128 v{vZ}, {vr(vACC,4)} offset:{LDS_ACC}")
    e("s_waitcnt lgkmcnt(0)")
    e("s_barrier")
    e("s_endpgm")
    e.label("L_helper")
    hL16, hA, hB, hF, hO = 8, 9, 10, 11, 6
    G = 12
    def Gk(k): return G + 8*(k-1)
    OWN = 36
    T1, U, FO = 44, 48, 52
    R = 56
    vAcc = lambda k: 2 + k
    vMl = lambda k: R + k
    e(f"v_and_b32 v{hL16}, 63, v0")
    e(f"v_lshlrev_b32 v{hL16}, 4, v{hL16}")
    e(f"s_lshl_b32 s{sSlot}, s{sHead}, 2")
    e(f"s_or_b32 s{sSlot}, s{sSlot}, s{sSplit}")
    for k in (1, 2, 3):
        e(f"s_xor_b32 s{sP+k-1}, s{sSlot}, {k}")
        e(f"s_lshl_b32 s{sP+k-1}, s{sP+k-1}, 10")
    e(f"s_lshl_b32 s{sSlot}, s{sSlot}, 10")
    e(f"v_add_u32 v{hA}, s{sSlot}, v{hL16}")
    for r in range(4): e(f"v_mov_b32 v{R+r}, -1")
    if s33: e("s_mov_b32 exec_hi, 1")
    if "S" not in diag: e(f"global_store_dwordx4 v{hA}, {vr(R,4)}, s[{sWS}:{sWS+1}] sc1")
    e(f"s_lshl_b32 s{sTmp}, s{sHead}, 2")
    e(f"v_mov_b32 v{hB}, s{sTmp}")
    e.c("count: 1 in the low byte, the id of this die in the nibble of this split")
    e(f"s_getreg_b32 s{sTmp}, hwreg(HW_REG_XCC_ID, 0, 4)")
    e(f"s_lshl_b32 s{sCnt}, s{sSplit}, 2")
    e(f"s_add_u32 s{sCnt}, s{sCnt}, 8")
    e(f"s_lshl_b32 s{sTmp}, s{sTmp}, s{sCnt}")
    e(f"s_or_b32 s{sTmp}, s{sTmp}, 1")
    e(f"v_mov_b32 v{hF}, s{sTmp}")
    e(f"s_mov_b32 s{sC}, {CHEX}")
    e.c("output offset: head*256 + (lane&15)*16 + (lane>>4)*8")
    if s33: e("s_mov_b32 exec_hi, -1")
    e(f"v_lshrrev_b32 v{hO}, 8, v{hL16}")
    e(f"v_and_b32 v{hA}, 0xf0, v{hL16}")
    e(f"v_lshlrev_b32 v{hO}, 3, v{hO}")
    e(f"v_add3_u32 v{hO}, v{hO}, v{hA}, s{sHeadB}")
    e("s_mov_b32 exec_hi, 0")
    e("s_mov_b32 exec_lo, 1")
    e(f"s_mov_b32 s{sOK}, 0")
    e(f"s_mov_b32 s{sLocal}, 0")
    e("s_waitcnt vmcnt(0)")
    stamp(2)
    if "A" not in diag: e(f"global_atomic_add v{hB}, v{hF}, s[{sD}:{sD+1}]")
    e("s_barrier                                       ; barrier 0")
    e(f"global_load_dword v{hF}, v{hB}, s[{sD}:{sD+1}] sc1")
    e("s_waitcnt vmcnt(0)")
    e(f"v_readfirstlane_b32 s{sTmp}, v{hF}")
    e(f"s_and_b32 s{sCnt}, s{sTmp}, 0xff")
    e(f"s_cmp_lg_u32 s{sCnt}, 4")
    e("s_cbranch_scc1 L_flags_done")
    e(f"s_mov_b32 s{sOK}, 1")
    if local:
        e(f"s_lshr_b32 s{sTmp}, s{sTmp}, 8")
        e(f"s_and_b32 s{sCnt}, s{sTmp}, 0xf")
        e(f"s_mul_i32 s{sCnt}, s{sCnt}, 0x1111")
        e(f"s_cmp_lg_u32 s{sCnt}, s{sTmp}")
        e("s_cbranch_scc1 L_flags_done")
        e(f"s_mov_b32 s{sLocal}, 1")
    if force == "slow":
        e(f"s_mov_b32 s{sOK}, 0"); e(f"s_mov_b32 s{sLocal}, 0")
    if force == "slowodd":
        e(f"s_bitcmp1_b32 s{sSplit}, 0"); e("s_cbranch_scc0 L_flags_done"); e(f"s_mov_b32 s{sOK}, 0"); e(f"s_mov_b32 s{sLocal}, 0")
    e.label("L_flags_done")
    stamp(3)
    e("s_mov_b32 exec_lo, -1")
    for k in (1, 2, 3):
        e(f"v_add_u32 v{vAcc(k)}, s{sP+k-1}, v{hL16}")
        e(f"v_mov_b32 v{vMl(k)}, s{sP+k-1}")
    e(f"v_mov_b32 v{hA}, 0")
    def attempt_loads():
        for k in (1, 2, 3):
            e(f"global_load_dwordx4 {vr(Gk(k),4)}, v{vAcc(k)}, s[{sWS}:{sWS+1}] sc1")
            e(f"global_load_dwordx2 {vr(Gk(k)+4,2)}, v{vMl(k)}, s[{sWS}:{sWS+1}] offset:512 sc1")
    def check(fail_label):
        e("s_waitcnt vmcnt(0)")
        X = R + 4
        e(f"v_max3_u32 v{X}, v{Gk(1)}, v{Gk(1)+1}, v{Gk(1)+2}")
        e(f"v_max3_u32 v{X+1}, v{Gk(2)}, v{Gk(2)+1}, v{Gk(2)+2}")
        e(f"v_max3_u32 v{X+2}, v{Gk(3)}, v{Gk(3)+1}, v{Gk(3)+2}")
        for k in (1, 2, 3):
            e(f"v_max3_u32 v{X+k-1}, v{X+k-1}, v{Gk(k)+3}, v{Gk(k)+4}")
        e(f"v_max3_u32 v{X}, v{X}, v{Gk(1)+5}, v{Gk(2)+5}")
        e(f"v_max3_u32 v{X+1}, v{X+1}, v{X+2}, v{Gk(3)+5}")
        e(f"v_max_u32 v{X}, v{X}, v{X+1}")
        e(f"v_cmp_eq_u32 vcc, -1, v{X}")
        e(f"s_cbranch_vccnz {fail_label}")
    def pkmul(d, a, f):
        lo = f & ~1
        sel = f & 1
        e(f"v_pk_mul_f32 {vr(d,2)}, {vr(a,2)}, {vr(lo,2)} op_sel:[0,{sel}] op_sel_hi:[1,{sel}]")
    def precompute():
        X = R + 4
        e(f"v_max3_f32 v{X}, v{OWN+4}, v{Gk(1)+4}, v{Gk(2)+4}")
        e(f"v_max_f32 v{X}, v{X}, v{Gk(3)+4}")
        e(f"v_sub_f32 v{FO}, v{OWN+4}, v{X}")
        for k in (1, 2, 3): e(f"v_sub_f32 v{X+k}, v{Gk(k)+4}, v{X}")
        e(f"v_exp_f32 v{FO}, v{FO}")
        for k in (1, 2, 3): e(f"v_exp_f32 v{X+k}, v{X+k}")
        e("s_nop 0")
        for h in (0, 2): pkmul(T1+h, Gk(1)+h, X+1)
        for h in (0, 2): pkmul(U+h, Gk(2)+h, X+2)
        for h in (0, 2): pkmul(Gk(3)+h, Gk(3)+h, X+3)
        e(f"v_mul_f32 v{FO+1}, v{X+1}, v{Gk(1)+5}")
        e(f"v_mul_f32 v{FO+2}, v{X+2}, v{Gk(2)+5}")
        e(f"v_mul_f32 v{X+3}, v{X+3}, v{Gk(3)+5}")
        for h in (0, 2): e(f"v_pk_add_f32 {vr(U+h,2)}, {vr(U+h,2)}, {vr(Gk(3)+h,2)}")
        e(f"v_add_f32 v{FO+2}, v{FO+2}, v{X+3}")
    e("s_barrier                                       ; barrier 1")
    stamp(4)
    if a0:
        e(f"s_cmp_eq_u32 s{sOK}, 0")
        e("s_cbranch_scc1 L_no_a0_loads")
        attempt_loads()
        e.label("L_no_a0_loads")
    e(f"ds_read_b128 {vr(R+8,4)}, v{hA} offset:{LDS_M}")
    e("s_waitcnt lgkmcnt(0)")
    e(f"v_max3_f32 v{R+8}, v{R+8}, v{R+9}, v{R+10}")
    e(f"v_max_f32 v{R+8}, v{R+8}, v{R+11}")
    e(f"v_mul_f32 v{OWN+4}, s{sC}, v{R+8}")
    e(f"s_mov_b32 s{sCnt}, 0")
    if a0:
        e(f"s_cmp_eq_u32 s{sOK}, 0")
        e("s_cbranch_scc1 L_a0_done")
        check("L_a0_done")
        precompute()
        e(f"s_mov_b32 s{sCnt}, 1")
        e.label("L_a0_done")
    e("s_barrier                                       ; barrier 2")
    stamp(5)
    if a05:
        e(f"s_cmp_lt_u32 s{sCnt}, s{sOK}")
        e("s_cbranch_scc0 L_no_a05_loads")
        attempt_loads()
        e.label("L_no_a05_loads")
    for w in range(4):
        e(f"ds_read_b128 {vr(R+8+4*w,4)}, v{hL16} offset:{LDS_ACC + 512*w}")
    e(f"ds_read_b128 {vr(R+24,4)}, v{hA} offset:{LDS_L}")
    e("s_waitcnt lgkmcnt(3)")
    e(f"v_pk_add_f32 {vr(R+8,2)}, {vr(R+8,2)}, {vr(R+12,2)}")
    e(f"v_pk_add_f32 {vr(R+10,2)}, {vr(R+10,2)}, {vr(R+14,2)}")
    e("s_waitcnt lgkmcnt(1)")
    e(f"v_pk_add_f32 {vr(R+16,2)}, {vr(R+16,2)}, {vr(R+20,2)}")
    e(f"v_pk_add_f32 {vr(R+18,2)}, {vr(R+18,2)}, {vr(R+22,2)}")
    e("s_waitcnt lgkmcnt(0)")
    e(f"v_add_f32 v{R+24}, v{R+24}, v{R+25}")
    e(f"v_add_f32 v{R+26}, v{R+26}, v{R+27}")
    e(f"v_pk_add_f32 {vr(OWN,2)}, {vr(R+8,2)}, {vr(R+16,2)}")
    e(f"v_pk_add_f32 {vr(OWN+2,2)}, {vr(R+10,2)}, {vr(R+18,2)}")
    e(f"v_add_f32 v{OWN+5}, v{R+24}, v{R+26}")
    e(f"s_cmp_eq_u32 s{sCnt}, 1")
    e("s_cbranch_scc1 L_final")
    if a05:
        e(f"s_cmp_eq_u32 s{sOK}, 0")
        e("s_cbranch_scc1 L_publish")
        check("L_publish")
        e("s_branch L_scale")
        e.label("L_publish")
    for r in range(6): e(f"v_min_u32 v{OWN+r}, 0xfffffffe, v{OWN+r}")
    e(f"v_add_u32 v{hB}, s{sSlot}, v{hL16}")
    e(f"v_mov_b32 v{hF}, s{sSlot}")
    if local:
        e(f"s_cmp_eq_u32 s{sLocal}, 1")
        e("s_cbranch_scc1 L_pub_local")
    e(f"global_store_dwordx4 v{hB}, {vr(OWN,4)}, s[{sWS}:{sWS+1}] sc1")
    e(f"global_store_dwordx2 v{hF}, {vr(OWN+4,2)}, s[{sWS}:{sWS+1}] offset:512 sc1")
    if local:
        e("s_branch L_pub_done")
        e.label("L_pub_local")
        e(f"global_store_dwordx4 v{hB}, {vr(OWN,4)}, s[{sWS}:{sWS+1}]")
        e(f"global_store_dwordx2 v{hF}, {vr(OWN+4,2)}, s[{sWS}:{sWS+1}] offset:512")
        e.label("L_pub_done")
    e(f"s_mov_b32 s{sCnt}, 2")
    e(f"s_cmp_eq_u32 s{sOK}, 1")
    e("s_cbranch_scc1 L_try")
    e.c("not all four had been counted: look at the count again once the own hand-off has landed")
    e(f"s_lshl_b32 s{sTmp}, s{sHead}, 2")
    e(f"v_mov_b32 v{hB}, s{sTmp}")
    e("s_waitcnt vmcnt(0)")
    e(f"global_load_dword v{hF}, v{hB}, s[{sD}:{sD+1}] sc1")
    e("s_waitcnt vmcnt(0)")
    e(f"v_readfirstlane_b32 s{sTmp}, v{hF}")
    e(f"s_mov_b32 s{sCnt}, 1")
    e(f"s_and_b32 s{sTmp}, s{sTmp}, 0xff")
    e(f"s_cmp_lg_u32 s{sTmp}, 4")
    e("s_cbranch_scc1 L_exit")
    e.label("L_try")
    attempt_loads()
    check("L_try_fail")
    e.label("L_scale")
    precompute()
    e.label("L_final")
    e.c("out = ((f0 a0 + f1 a1) + (f2 a2 + f3 a3)) / (same over l); pairs by slot, so every finisher gets the same bits")
    e(f"v_mul_f32 v{R+9}, v{FO}, v{OWN+5}")
    for h in (0, 2): pkmul(OWN+h, OWN+h, FO)
    e(f"v_add_f32 v{R+9}, v{R+9}, v{FO+1}")
    for h in (0, 2): e(f"v_pk_add_f32 {vr(OWN+h,2)}, {vr(OWN+h,2)}, {vr(T1+h,2)}")
    e(f"v_add_f32 v{R+9}, v{R+9}, v{FO+2}")
    for h in (0, 2): e(f"v_pk_add_f32 {vr(OWN+h,2)}, {vr(OWN+h,2)}, {vr(U+h,2)}")
    e(f"v_rcp_f32 v{R+8}, v{R+9}")
    e("s_nop 0")
    for h in (0, 2): pkmul(OWN+h, OWN+h, R+8)
    e(f"v_cvt_pk_bf16_f32 v{R}, v{OWN}, v{OWN+1}")
    e(f"v_cvt_pk_bf16_f32 v{R+1}, v{OWN+2}, v{OWN+3}")
    e(f"global_store_dwordx2 v{hO}, {vr(R,2)}, s[{sO}:{sO+1}]{(' ' + outst) if outst else ''}")
    if stamps:
        e("s_waitcnt vmcnt(0)")
        e(f"s_mov_b32 s{sCnt}, 3")
        e("s_branch L_exit_stamp")
    else:
        e("s_endpgm")
    e.label("L_try_fail")
    e(f"s_sub_u32 s{sCnt}, s{sCnt}, 1")
    e(f"s_cmp_lg_u32 s{sCnt}, 0")
    e("s_cbranch_scc1 L_try")
    e.label("L_exit")
    if stamps:
        e(f"s_mov_b32 s{sCnt}, 0")
        e.label("L_exit_stamp")
        stamp(6)
        e(f"s_lshl_b32 s33, s2, 6")
        e(f"s_add_u32 s33, s33, 0x4000000")
        e(f"v_mov_b32 v{hB}, s33")
        e(f"s_lshl_b32 s34, s{sLocal}, 1")
        e(f"s_or_b32 s34, s34, s{sOK}")
        for i, sr in enumerate((40, 42, 44, 46, 48, 50, 52, sCnt)): e(f"v_mov_b32 v{R+i}, s{sr}")
        e(f"v_mov_b32 v{R+8}, s52"); e(f"v_mov_b32 v{R+9}, s34")
        e("s_getreg_b32 s38, hwreg(HW_REG_HW_ID)"); e("s_getreg_b32 s39, hwreg(HW_REG_XCC_ID)")
        e(f"v_mov_b32 v{R+10}, s38"); e(f"v_mov_b32 v{R+11}, s39")
        e(f"global_store_dwordx4 v{hB}, {vr(R,4)}, s[{sWS}:{sWS+1}]")
        e(f"global_store_dwordx4 v{hB}, {vr(R+4,4)}, s[{sWS}:{sWS+1}] offset:16")
        e(f"global_store_dwordx4 v{hB}, {vr(R+8,4)}, s[{sWS}:{sWS+1}] offset:32")
    e.label("L_end")
    e("s_endpgm")
    out = HEADER + f"; @launch grid=(256,1,1) block=({NW*64+64},1,1) lds={lds_bytes}\n"
    out += f""".amdgcn_target "amdgcn-amd-amdhsa--gfx950"
.text
.globl {NAME}
.p2align 8
.type {NAME},@function
{NAME}:
""" + e.text() + f""".section .rodata,"a"
.p2align 6
.amdhsa_kernel {NAME}
  .amdhsa_next_free_vgpr {nvgpr}
  .amdhsa_next_free_sgpr 64
  .amdhsa_accum_offset {min(256, nvgpr)}
  .amdhsa_group_segment_fixed_size 0
  .amdhsa_kernarg_size 48
  .amdhsa_user_sgpr_count 2
  .amdhsa_user_sgpr_kernarg_segment_ptr 1
  .amdhsa_system_sgpr_workgroup_id_x 1
  .amdhsa_float_denorm_mode_32 3
.end_amdhsa_kernel
"""
    return out

if __name__ == "__main__":
    ap = argparse.ArgumentParser()
    ap.add_argument("-D", type=int, default=5)
    ap.add_argument("--ld", default="nt")
    ap.add_argument("--stamps", action="store_true")
    ap.add_argument("--noa0", action="store_true")
    ap.add_argument("--noa05", action="store_true")
    ap.add_argument("--nolocal", action="store_true")
    ap.add_argument("--xmap", type=int, default=1)
    ap.add_argument("--outst", default="")
    ap.add_argument("--force", default="")
    ap.add_argument("--s33", action="store_true")
    ap.add_argument("--dpat", default=None)
    ap.add_argument("--diag", default="")
    ap.add_argument("-o", default="/dev/stdout")
    a = ap.parse_args()
    open(a.o, "w").write(gen(a.D, a.ld, a.stamps, 256, not a.noa0, not a.noa05, a.outst, not a.nolocal, a.xmap, a.force, a.s33, [int(c) for c in a.dpat] if a.dpat else None, a.diag))
```
